```python
import torch

def _softmax(x, axis=-1):
    return torch.softmax(x, dim=axis)
def _gelu(x):
    return torch.nn.functional.gelu(x, approximate="tanh")
def _silu(x):
    return torch.nn.functional.silu(x)
def _sigmoid(x):
    return torch.sigmoid(x)
def _layernorm(x, axis=-1, eps=1e-5):
    m = x.mean(dim=axis, keepdim=True)
    v = x.var(dim=axis, keepdim=True, unbiased=False)
    return (x - m) / torch.sqrt(v + eps)
def _scatter_add(tgt, idx, src, axis=0):
    return tgt.clone().index_add_(axis, idx, src)
def _segment_sum(src, seg, n):
    out = torch.zeros((n,) + src.shape[1:], dtype=src.dtype)
    return out.index_add_(0, seg, src)
def _pad(x, pw):
    flat = tuple(v for pair in reversed(pw) for v in pair)
    return torch.nn.functional.pad(x, flat)

kernel_name = 'standalone__sliding_block_cached__decode'

def setup_inputs():

    _w = (lambda a: (lambda t: t.to(torch.bfloat16) if t.is_floating_point() else t)(torch.as_tensor(a)))
    B, Sq, D = 2, 1, 640
    Hq, Hkv, Sk, Dh = 32, 32, 4096, 128
    assert Hq % Hkv == 0, (Hq, Hkv)
    return {
        "x": _w((lambda *s: torch.randn(*s, dtype=torch.bfloat16) * 0.8)(B, Sq, D)),
        "k_cache": _w((lambda *s: torch.randn(*s, dtype=torch.bfloat16) * 0.8)(B, Hkv, Sk, Dh)),
        "v_cache": _w((lambda *s: torch.randn(*s, dtype=torch.bfloat16) * 0.05)(B, Hkv, Sk, Dh)),
        "wq": _w((lambda *s: torch.randn(*s, dtype=torch.bfloat16) * 0.8)(D, Hq * Dh) * (D ** -0.5)),
        "wo": _w((lambda *s: torch.randn(*s, dtype=torch.bfloat16) * 0.05)(Hq * Dh, D) * ((Hq * Dh) ** -0.5)),
    }

def reference(x, k_cache, v_cache, wq, wo):
    B, Sq, D = x.shape
    Hq, Dh = 32, 128
    Hkv, Sk = k_cache.shape[1], k_cache.shape[2]
    W = min(4096, max(256, Sk // 4))
    rep = Hq // Hkv
    q = (lambda x, *d: x.permute(*d))((x @ wq).reshape(B, Sq, Hq, Dh), 0, 2, 1, 3)
    k = (lambda x, n, axis: torch.repeat_interleave(x, n, dim=axis))(k_cache[:, :, Sk - W:, :], rep, axis=1)
    v = (lambda x, n, axis: torch.repeat_interleave(x, n, dim=axis))(v_cache[:, :, Sk - W:, :], rep, axis=1)
    scores = torch.einsum("bhqd,bhkd->bhqk", q, k) * (Dh ** -0.5)
    p = _softmax(scores, axis=-1)
    o = torch.einsum("bhqk,bhkd->bhqd", p, v)
    return (lambda x, *d: x.permute(*d))(o, 0, 2, 1, 3).reshape(B, Sq, Hq * Dh) @ wo
```

```python
import sys

HEADER = """; Kernarg layout for this problem (64 bytes, ptrs only, base s[0:1]):
"""

QPART = 0
QBF = 8192
OBUF = 8704
MLBUF = 12800
YBUF = 13312
LDS1 = YBUF + 40960

ML_OFF = 256 * 5120


def k1():
    L = []
    e = L.append
    N = "standalone__sliding_block_cached__decode_kernel"
    e(".p2align 8")
    e(f".type {N},@function")
    e(f"{N}:")
    e("s_cmp_ge_u32 s2, 256")
    e("s_cbranch_scc1 L_k1_end")
    e("s_load_dwordx16 s[4:19], s[0:1], 0")
    e("v_lshrrev_b32 v9, 6, v0")
    e("v_and_b32 v1, 63, v0")
    e("v_readfirstlane_b32 s46, v9")
    e("v_and_b32 v2, 15, v1")
    e("v_lshrrev_b32 v3, 4, v1")
    e("s_and_b32 s44, s2, 31")
    e("s_lshr_b32 s45, s2, 5")
    e("v_mul_u32_u24 v4, 0x28000, v3")
    e("v_lshl_add_u32 v4, v2, 4, v4")
    e("v_lshrrev_b32 v9, 3, v2")
    e("v_mul_u32_u24 v5, 1280, v9")
    e("v_mul_u32_u24 v29, 40, v3")
    e("v_add_u32 v5, v5, v29")
    e("v_lshlrev_b32 v6, 8, v2")
    e("v_lshl_add_u32 v6, v3, 4, v6")
    e("v_lshlrev_b32 v7, 10, v3")
    e("v_lshl_add_u32 v7, v2, 4, v7")
    e("v_mul_u32_u24 v8, 5120, v3")
    e("v_lshl_add_u32 v8, v2, 4, v8")
    e("s_lshr_b32 s47, s46, 2")
    e("s_mul_i32 s48, s46, 655360")
    e("s_lshl_b32 s55, s44, 8")
    e("s_add_u32 s48, s48, s55")
    e("s_mul_i32 s51, s46, 160")
    e("s_lshl_b32 s49, s47, 5")
    e("s_add_u32 s49, s49, s44")
    e("s_lshl_b32 s49, s49, 20")
    e("s_add_u32 s49, s49, 786432")
    e("s_lshl_b32 s55, s45, 15")
    e("s_add_u32 s49, s49, s55")
    e("s_and_b32 s55, s46, 3")
    e("s_lshl_b32 s55, s55, 13")
    e("s_add_u32 s49, s49, s55")
    e("s_add_u32 s50, s49, 4096")
    e("s_lshl_b32 s53, s44, 7")
    e("s_lshl_b32 s55, s46, 4")
    e("s_add_u32 s53, s53, s55")
    e("s_mul_i32 s53, s53, 1280")
    e("s_add_u32 s54, s53, 2560")
    e("s_mov_b32 s56, 0x01000100")
    e("s_mov_b32 s57, 0x03020302")
    import math
    C = (128 ** -0.5) * math.log2(math.e)
    import struct
    Cbits = struct.unpack("<I", struct.pack("<f", C))[0]
    e(f"s_mov_b32 s58, 0x{Cbits:08x}")
    e("s_waitcnt lgkmcnt(0)")
    srds = [(20, 4, 2560), (24, 6, 67108864), (28, 8, 67108864), (32, 10, 5242880), (36, 12, 5242880), (40, 18, ML_OFF + 4096)]
    for d, b, sz in srds:
        e(f"s_mov_b32 s{d}, s{b}")
        e(f"s_mov_b32 s{d+1}, s{b+1}")
        e(f"s_mov_b32 s{d+2}, {sz}")
        e(f"s_mov_b32 s{d+3}, 0x00020000")
    for i in range(5):
        e(f"buffer_load_dwordx2 v[{10+2*i}:{11+2*i}], v5, s[20:23], s51 offen offset:{8*i}")
    for i in range(20):
        e(f"buffer_load_dwordx4 v[{64+4*i}:{67+4*i}], v4, s[32:35], s48 offen")
        if i < 19:
            e("s_add_u32 s48, s48, 8192")
    for T in range(2):
        for t in range(4):
            n = T * 4 + t
            e(f"buffer_load_dwordx4 v[{144+4*n}:{147+4*n}], v6, s[24:27], s{49+T} offen offset:{t*64}")
    for T in range(2):
        for i in range(4):
            n = T * 4 + i
            e(f"buffer_load_dwordx4 v[{176+4*n}:{179+4*n}], v7, s[28:31], s{49+T} offen offset:{i*256}")
    e("v_and_b32 v28, 1, v2")
    e("v_lshlrev_b32 v28, 4, v28")
    e("v_mov_b32 v29, 0xffff")
    e("v_lshlrev_b32 v28, v28, v29")
    e("v_bfe_u32 v29, v2, 1, 2")
    for r in range(4):
        e(f"v_cmp_eq_u32 vcc, {r}, v29")
        e("s_nop 1")
        e(f"v_cndmask_b32 v{20+r}, 0, v28, vcc")
    e("s_waitcnt vmcnt(36)")
    for i in range(20):
        X = 10 + i // 2
        e(f"v_perm_b32 v28, v{X}, v{X}, s{56 + (i & 1)}")
        for r in range(4):
            e(f"v_and_b32 v{24+r}, v28, v{20+r}")
        e(f"s_waitcnt vmcnt({35 - i})")
        e("s_nop 0")
        c = "0" if i == 0 else "v[40:43]"
        e(f"v_mfma_f32_16x16x32_bf16 v[40:43], v[24:27], v[{64+4*i}:{67+4*i}], {c}")
    for j in range(4):
        for cb in range(5):
            n = j * 5 + cb
            e(f"buffer_load_dwordx4 v[{64+4*n}:{67+4*n}], v8, s[36:39], s{53 + j//2} offen offset:{(j%2)*1280 + cb*256}")
    e("v_lshlrev_b32 v28, 4, v0")
    e(f"ds_write_b128 v28, v[40:43] offset:{QPART}")
    e("s_waitcnt lgkmcnt(0)")
    e("s_barrier")
    e("s_cmp_lg_u32 s46, 0")
    e("s_cbranch_scc1 L_k1_qred_done")
    for w in range(8):
        e(f"ds_read_b128 v[{208+4*w}:{211+4*w}], v28 offset:{QPART + w*1024}")
    e("v_lshrrev_b32 v29, 1, v3")
    e("v_lshlrev_b32 v29, 8, v29")
    e("v_lshl_add_u32 v29, v2, 4, v29")
    e("v_and_b32 v30, 1, v3")
    e("v_lshl_add_u32 v29, v30, 3, v29")
    e("s_waitcnt lgkmcnt(0)")
    for step in (4, 2, 1):
        for w in range(step):
            for i in range(4):
                e(f"v_add_f32 v{208+4*w+i}, v{208+4*w+i}, v{208+4*(w+step)+i}")
    e("v_cvt_pk_bf16_f32 v30, v208, v209")
    e("v_cvt_pk_bf16_f32 v31, v210, v211")
    e(f"ds_write_b64 v29, v[30:31] offset:{QBF}")
    e("s_waitcnt lgkmcnt(0)")
    e("L_k1_qred_done:")
    e("s_barrier")
    e("s_lshl_b32 s55, s47, 8")
    e("v_lshl_add_u32 v28, v3, 4, s55")
    for t in range(4):
        e(f"ds_read_b128 v[{44+4*t}:{47+4*t}], v28 offset:{QBF + t*64}")
    e("s_waitcnt lgkmcnt(0)")
    for T in range(2):
        for t in range(4):
            n = T * 4 + t
            e(f"s_waitcnt vmcnt({35 - n})")
            acc = f"v[{32+4*T}:{35+4*T}]"
            c = "0" if t == 0 else acc
            e(f"v_mfma_f32_16x16x32_bf16 {acc}, v[{144+4*n}:{147+4*n}], v[{44+4*t}:{47+4*t}], {c}")
    e("s_nop 7")
    e("v_max3_f32 v28, v32, v33, v34")
    e("v_max3_f32 v28, v28, v35, v36")
    e("v_max3_f32 v28, v28, v37, v38")
    e("v_max_f32 v28, v28, v39")
    e("s_nop 0")
    for k in range(4):
        e(f"v_readlane_b32 s{60+k}, v28, {16*k}")
    e("s_nop 1")
    e("v_mov_b32 v30, s60")
    for k in range(1, 4):
        e(f"v_max_f32 v30, s{60+k}, v30")
    e("v_mul_f32 v30, s58, v30")
    for j in range(8):
        e(f"v_fma_f32 v{32+j}, v{32+j}, s58, -v30")
    for j in range(8):
        e(f"v_exp_f32 v{32+j}, v{32+j}")
    e("s_nop 0")
    e("v_add_f32 v28, v32, v33")
    e("v_add_f32 v29, v34, v35")
    e("v_add_f32 v31, v36, v37")
    e("v_add_f32 v28, v28, v29")
    e("v_add_f32 v29, v38, v39")
    e("v_add_f32 v31, v31, v29")
    e("v_add_f32 v28, v28, v31")
    e("s_nop 0")
    for k in range(4):
        e(f"v_readlane_b32 s{60+k}, v28, {16*k}")
    e("s_nop 1")
    e("v_mov_b32 v31, s60")
    for k in range(1, 4):
        e(f"v_add_f32 v31, s{60+k}, v31")
    for n in range(8):
        e(f"v_cvt_pk_bf16_f32 v28, v{32+n}, v{32+n}")
        for r in range(4):
            e(f"v_and_b32 v{24+r}, v28, v{20+r}")
        e(f"s_waitcnt vmcnt({27 - n})")
        e("s_nop 0")
        c = "0" if n == 0 else "v[40:43]"
        e(f"v_mfma_f32_16x16x32_bf16 v[40:43], v[24:27], v[{176+4*n}:{179+4*n}], {c}")
    e("s_lshl_b32 s55, s46, 9")
    e("v_lshlrev_b32 v28, 5, v2")
    e("v_lshl_add_u32 v28, v3, 4, v28")
    e("v_add_u32 v28, s55, v28")
    e("s_lshl_b32 s55, s46, 3")
    e("v_mov_b32 v29, s55")
    e("s_nop 3")
    e("s_mov_b32 exec_lo, -1")
    e("s_mov_b32 exec_hi, 0")
    e(f"ds_write_b128 v28, v[40:43] offset:{OBUF}")
    e(f"ds_write_b64 v29, v[30:31] offset:{MLBUF}")
    e("s_mov_b64 exec, -1")
    e("s_waitcnt lgkmcnt(0)")
    e("s_barrier")
    e("v_lshrrev_b32 v9, 3, v2")
    e("v_lshlrev_b32 v28, 5, v9")
    e(f"ds_read_b128 v[208:211], v28 offset:{MLBUF}")
    e(f"ds_read_b128 v[212:215], v28 offset:{MLBUF+16}")
    e("s_lshl_b32 s55, s46, 6")
    e("v_lshlrev_b32 v29, 11, v9")
    e("v_lshl_add_u32 v29, v3, 4, v29")
    e("v_add_u32 v29, s55, v29")
    for k in range(4):
        e(f"ds_read_b128 v[{216+4*k}:{219+4*k}], v29 offset:{OBUF + k*512}")
    e("s_waitcnt lgkmcnt(4)")
    e("v_max3_f32 v28, v208, v210, v212")
    e("v_max_f32 v28, v28, v214")
    for k in range(4):
        e(f"v_sub_f32 v{232+k}, v{208+2*k}, v28")
    for k in range(4):
        e(f"v_exp_f32 v{232+k}, v{232+k}")
    e("s_nop 0")
    e("v_mul_f32 v29, v232, v209")
    for k in range(1, 4):
        e(f"v_fmac_f32 v29, v{232+k}, v{209+2*k}")
    e("s_waitcnt lgkmcnt(0)")
    for j in range(4):
        e(f"v_mul_f32 v{236+j}, v232, v{216+j}")
    for k in range(1, 4):
        for j in range(4):
            e(f"v_fmac_f32 v{236+j}, v{232+k}, v{216+4*k+j}")
    for j in range(4):
        e(f"v_cvt_pk_bf16_f32 v30, v{236+j}, v{236+j}")
        for r in range(4):
            e(f"v_and_b32 v{240+4*j+r}, v30, v{20+r}")
    e("s_nop 1")
    for j in range(4):
        for cb in range(5):
            n = j * 5 + cb
            e(f"s_waitcnt vmcnt({19 - n})")
            acc = f"v[{144+4*cb}:{147+4*cb}]"
            c = "0" if j == 0 else acc
            e(f"v_mfma_f32_16x16x32_bf16 {acc}, v[{240+4*j}:{243+4*j}], v[{64+4*n}:{67+4*n}], {c}")
    e("s_mul_i32 s55, s46, 5120")
    e("v_lshl_add_u32 v30, v1, 4, s55")
    e("s_cmp_lg_u32 s46, 0")
    e("s_cbranch_scc1 L_k1_noml")
    e("s_lshl_b32 s55, s44, 3")
    e("s_add_u32 s55, s55, s45")
    e("s_lshl_b32 s55, s55, 3")
    e(f"s_add_u32 s55, s55, {ML_OFF}")
    e("v_lshlrev_b32 v31, 11, v9")
    e("s_mov_b32 exec_lo, 0x101")
    e("s_mov_b32 exec_hi, 0")
    e("buffer_store_dwordx2 v[28:29], v31, s[40:43], s55 offen")
    e("s_mov_b64 exec, -1")
    e("L_k1_noml:")
    e("s_nop 7")
    for cb in range(5):
        e(f"ds_write_b128 v30, v[{144+4*cb}:{147+4*cb}] offset:{YBUF + cb*1024}")
    e("s_waitcnt lgkmcnt(0)")
    e("s_barrier")
    e("s_cmp_ge_u32 s46, 5")
    e("s_cbranch_scc1 L_k1_end")
    e("v_lshlrev_b32 v28, 4, v0")
    for w in range(8):
        e(f"ds_read_b128 v[{208+4*w}:{211+4*w}], v28 offset:{YBUF + w*5120}")
    e("s_lshl_b32 s55, s44, 3")
    e("s_add_u32 s55, s55, s45")
    e("s_mul_i32 s55, s55, 5120")
    e("s_lshl_b32 s59, s46, 9")
    e("s_add_u32 s55, s55, s59")
    e("v_lshrrev_b32 v29, 1, v3")
    e("v_mul_u32_u24 v29, 2560, v29")
    e("v_lshl_add_u32 v29, v2, 5, v29")
    e("v_and_b32 v30, 1, v3")
    e("v_lshl_add_u32 v29, v30, 4, v29")
    e("s_waitcnt lgkmcnt(0)")
    for step in (4, 2, 1):
        for w in range(step):
            for i in range(4):
                e(f"v_add_f32 v{208+4*w+i}, v{208+4*w+i}, v{208+4*(w+step)+i}")
    e("buffer_store_dwordx4 v[208:211], v29, s[40:43], s55 offen")
    e("L_k1_end:")
    e("s_endpgm")
    return L


def k2():
    L = []
    e = L.append
    N = "final_reduce_kernel"
    e(".p2align 8")
    e(f".type {N},@function")
    e(f"{N}:")
    e("s_cmp_ge_u32 s2, 40")
    e("s_cbranch_scc1 L_k2_end")
    e("s_load_dwordx2 s[4:5], s[0:1], 40")
    e("s_load_dwordx2 s[6:7], s[0:1], 56")
    e("s_cmp_ge_u32 s2, 20")
    e("s_cselect_b32 s20, 1, 0")
    e("s_mul_i32 s21, s20, 20")
    e("s_sub_u32 s21, s2, s21")
    e("v_and_b32 v1, 7, v0")
    e("v_lshrrev_b32 v2, 3, v0")
    e("v_mul_u32_u24 v3, 40960, v2")
    e("v_lshl_add_u32 v3, v1, 4, v3")
    e("v_lshlrev_b32 v4, 6, v2")
    e("s_mul_i32 s22, s20, 2560")
    e("s_lshl_b32 s23, s21, 7")
    e("s_add_u32 s22, s22, s23")
    e("s_lshl_b32 s23, s20, 11")
    e(f"s_add_u32 s23, s23, {ML_OFF}")
    e("s_waitcnt lgkmcnt(0)")
    for d, b, sz in [(8, 4, 2560), (12, 6, ML_OFF + 4096)]:
        e(f"s_mov_b32 s{d}, s{b}")
        e(f"s_mov_b32 s{d+1}, s{b+1}")
        e(f"s_mov_b32 s{d+2}, {sz}")
        e(f"s_mov_b32 s{d+3}, 0x00020000")
    for k in range(4):
        e(f"buffer_load_dwordx4 v[{16+4*k}:{19+4*k}], v4, s[12:15], s23 offen offset:{16*k}")
    for s in range(8):
        e(f"buffer_load_dwordx4 v[{32+4*s}:{35+4*s}], v3, s[12:15], s22 offen")
        if s < 7:
            e("s_add_u32 s22, s22, 5120")
    e("s_waitcnt vmcnt(8)")
    e("v_max3_f32 v5, v16, v18, v20")
    e("v_max3_f32 v5, v5, v22, v24")
    e("v_max3_f32 v5, v5, v26, v28")
    e("v_max_f32 v5, v5, v30")
    for s in range(8):
        e(f"v_sub_f32 v{8+s}, v{16+2*s}, v5")
    for s in range(8):
        e(f"v_exp_f32 v{8+s}, v{8+s}")
    e("s_nop 0")
    e("v_mul_f32 v6, v8, v17")
    for s in range(1, 8):
        e(f"v_fmac_f32 v6, v{8+s}, v{17+2*s}")
    e("v_rcp_f32 v6, v6")
    e("s_nop 0")
    for s in range(8):
        e(f"v_mul_f32 v{8+s}, v{8+s}, v6")
    for s in range(8):
        e(f"s_waitcnt vmcnt({7 - s})")
        for i in range(4):
            if s == 0:
                e(f"v_mul_f32 v{64+i}, v8, v{32+i}")
            else:
                e(f"v_fmac_f32 v{64+i}, v{8+s}, v{32+4*s+i}")
    e("v_lshlrev_b32 v7, 4, v0")
    e("ds_write_b128 v7, v[64:67]")
    e("s_waitcnt lgkmcnt(0)")
    e("s_barrier")
    e("v_cmp_gt_u32 vcc, 32, v0")
    e("s_and_saveexec_b64 s[24:25], vcc")
    e("s_cbranch_execz L_k2_end")
    e("v_lshlrev_b32 v7, 2, v0")
    for h in range(32):
        e(f"ds_read_b32 v{16+h}, v7 offset:{h*128}")
    e("s_mul_i32 s26, s20, 1280")
    e("s_lshl_b32 s27, s21, 6")
    e("s_add_u32 s26, s26, s27")
    e("v_lshlrev_b32 v7, 1, v0")
    e("s_waitcnt lgkmcnt(0)")
    for step in (16, 8, 4, 2, 1):
        for h in range(step):
            e(f"v_add_f32 v{16+h}, v{16+h}, v{16+h+step}")
    e("v_cvt_pk_bf16_f32 v16, v16, v16")
    e("buffer_store_short v16, v7, s[8:11], s26 offen")
    e("L_k2_end:")
    e("s_endpgm")
    return L


def kd(name, vgpr, sgpr):
    acc = (vgpr + 3) // 4 * 4
    return f""".amdhsa_kernel {name}
  .amdhsa_next_free_vgpr {vgpr}
  .amdhsa_next_free_sgpr {sgpr}
  .amdhsa_accum_offset {acc}
  .amdhsa_group_segment_fixed_size 0
  .amdhsa_kernarg_size 64
  .amdhsa_user_sgpr_count 2
  .amdhsa_user_sgpr_kernarg_segment_ptr 1
  .amdhsa_system_sgpr_workgroup_id_x 1
.end_amdhsa_kernel
"""


def main():
    out = [HEADER.rstrip("\n")]
    out.append(f"; @launch kernel=standalone__sliding_block_cached__decode_kernel grid=(256,1,1) block=(512,1,1) lds={LDS1}")
    out.append("; @launch kernel=final_reduce_kernel grid=(40,1,1) block=(256,1,1) lds=4096")
    out.append('.amdgcn_target "amdgcn-amd-amdhsa--gfx950"')
    out.append(".text")
    out.append(".globl standalone__sliding_block_cached__decode_kernel")
    out.append(".globl final_reduce_kernel")
    out += k1()
    out += k2()
    out.append('.section .rodata,"a"')
    out.append(".p2align 6")
    out.append(kd("standalone__sliding_block_cached__decode_kernel", 256, 72))
    out.append(".p2align 6")
    out.append(kd("final_reduce_kernel", 72, 40))
    sys.stdout.write("\n".join(out))


main()
```

```python
import sys, math, struct
INSTR = 'instr' in sys.argv[1:]
STAMP = [0]

HEADER = """; Kernarg layout for this problem (64 bytes, ptrs only, base s[0:1]):
"""

QBF = 0
OBUF = 512
MLBUF = 4608
YBUF = 5120
LDS1 = YBUF + 40960

ML_OFF = 256 * 5120
QX_OFF = ML_OFF + 4096
WS_SIZE = QX_OFF + 256 * 1024


def k1():
    L = []
    e = L.append

    def stamp():
        if INSTR:
            k = STAMP[0]; STAMP[0] += 1
            e(f"s_memtime s[{64+2*k}:{65+2*k}]")

    def bulk_loads():
        for T in range(2):
            for t in range(4):
                n = T * 4 + t
                e(f"buffer_load_dwordx4 v[{144+4*n}:{147+4*n}], v6, s[24:27], s{49+T} offen offset:{t*64}")
        for T in range(2):
            for i in range(4):
                n = T * 4 + i
                e(f"buffer_load_dwordx4 v[{176+4*n}:{179+4*n}], v7, s[28:31], s{49+T} offen offset:{i*256}")
        for j in range(4):
            for cb in range(5):
                n = j * 5 + cb
                e(f"buffer_load_dwordx4 v[{64+4*n}:{67+4*n}], v8, s[36:39], s{53 + j//2} offen offset:{(j%2)*1280 + cb*256}")

    N = "standalone__sliding_block_cached__decode_kernel"
    e(".p2align 8")
    e(f".type {N},@function")
    e(f"{N}:")
    e("s_cmp_ge_u32 s2, 256")
    e("s_cbranch_scc1 L_k1_end")
    e("s_load_dwordx16 s[4:19], s[0:1], 0")
    if INSTR:
        e("s_memrealtime s[96:97]")
    stamp()
    e("v_lshrrev_b32 v9, 6, v0")
    e("v_and_b32 v1, 63, v0")
    e("v_readfirstlane_b32 s46, v9")
    e("v_and_b32 v2, 15, v1")
    e("v_lshrrev_b32 v3, 4, v1")
    e("s_and_b32 s44, s2, 7")
    e("s_lshl_b32 s44, s44, 2")
    e("s_bfe_u32 s55, s2, 0x20003")
    e("s_or_b32 s44, s44, s55")
    e("s_lshr_b32 s45, s2, 5")
    e("v_mul_u32_u24 v4, 0x28000, v3")
    e("v_lshl_add_u32 v4, v2, 4, v4")
    e("v_lshrrev_b32 v9, 3, v2")
    e("v_mul_u32_u24 v5, 1280, v9")
    e("v_mul_u32_u24 v29, 40, v3")
    e("v_add_u32 v5, v5, v29")
    e("v_lshlrev_b32 v6, 8, v2")
    e("v_lshl_add_u32 v6, v3, 4, v6")
    e("v_lshlrev_b32 v7, 10, v3")
    e("v_lshl_add_u32 v7, v2, 4, v7")
    e("v_mul_u32_u24 v8, 5120, v3")
    e("v_lshl_add_u32 v8, v2, 4, v8")
    e("s_lshr_b32 s47, s46, 2")
    e("s_mul_i32 s48, s45, 655360")
    e("s_lshl_b32 s55, s44, 8")
    e("s_add_u32 s48, s48, s55")
    e("s_mul_i32 s51, s45, 160")
    e("s_lshl_b32 s49, s47, 5")
    e("s_add_u32 s49, s49, s44")
    e("s_lshl_b32 s49, s49, 20")
    e("s_add_u32 s49, s49, 786432")
    e("s_lshl_b32 s55, s45, 15")
    e("s_add_u32 s49, s49, s55")
    e("s_and_b32 s55, s46, 3")
    e("s_lshl_b32 s55, s55, 13")
    e("s_add_u32 s49, s49, s55")
    e("s_add_u32 s50, s49, 4096")
    e("s_lshl_b32 s53, s44, 7")
    e("s_lshl_b32 s55, s46, 4")
    e("s_add_u32 s53, s53, s55")
    e("s_mul_i32 s53, s53, 1280")
    e("s_add_u32 s54, s53, 2560")
    e("s_mov_b32 s56, 0x01000100")
    e("s_mov_b32 s57, 0x03020302")
    C = (128 ** -0.5) * math.log2(math.e)
    Cbits = struct.unpack("<I", struct.pack("<f", C))[0]
    e(f"s_mov_b32 s58, 0x{Cbits:08x}")
    e("v_and_b32 v28, 1, v2")
    e("v_lshlrev_b32 v28, 4, v28")
    e("v_mov_b32 v29, 0xffff")
    e("v_lshlrev_b32 v28, v28, v29")
    e("v_bfe_u32 v29, v2, 1, 2")
    for r in range(4):
        e(f"v_cmp_eq_u32 vcc, {r}, v29")
        e("s_nop 1")
        e(f"v_cndmask_b32 v{20+r}, 0, v28, vcc")
    e("s_waitcnt lgkmcnt(0)")
    srds = [(24, 6, 67108864), (28, 8, 67108864), (36, 12, 5242880), (40, 18, 0x10000000 if INSTR else WS_SIZE)]
    for d, b, sz in srds:
        e(f"s_mov_b32 s{d}, s{b}")
        e(f"s_mov_b32 s{d+1}, s{b+1}")
        e(f"s_mov_b32 s{d+2}, {sz}")
        e(f"s_mov_b32 s{d+3}, 0x00020000")
    stamp()
    e("s_cmp_eq_u32 s46, 0")
    e("s_cbranch_scc1 L_k1_wave0")
    bulk_loads()
    if INSTR:
        for k in range(5):
            e(f"s_memtime s[{64+2*(STAMP[0]+k)}:{65+2*(STAMP[0]+k)}]")
    e("s_branch L_k1_qready")
    e("L_k1_wave0:")
    for d, b, sz in [(20, 4, 2560), (32, 10, 5242880), (60, 16, 256)]:
        e(f"s_mov_b32 s{d}, s{b}")
        e(f"s_mov_b32 s{d+1}, s{b+1}")
        e(f"s_mov_b32 s{d+2}, {sz}")
        e(f"s_mov_b32 s{d+3}, 0x00020000")
    for i in range(5):
        e(f"buffer_load_dwordx2 v[{10+2*i}:{11+2*i}], v5, s[20:23], s51 offen offset:{8*i}")
    for i in range(20):
        e(f"buffer_load_dwordx4 v[{64+4*i}:{67+4*i}], v4, s[32:35], s48 offen")
        if i < 19:
            e("s_add_u32 s48, s48, 8192")
    e("s_lshl_b32 s52, s44, 13")
    e(f"s_add_u32 s52, s52, {QX_OFF}")
    e("s_lshl_b32 s55, s45, 10")
    e("s_add_u32 s55, s55, s52")
    e("v_lshlrev_b32 v30, 4, v1")
    e("s_lshl_b32 s59, s44, 2")
    e("v_mov_b32 v31, s59")
    e("v_mov_b32 v29, 1")
    e("s_waitcnt vmcnt(20)")
    for i in range(20):
        X = 10 + i // 2
        e(f"v_perm_b32 v28, v{X}, v{X}, s{56 + (i & 1)}")
        for r in range(4):
            e(f"v_and_b32 v{24+r}, v28, v{20+r}")
        e(f"s_waitcnt vmcnt({19 - i})")
        e("s_nop 0")
        c = "0" if i == 0 else "v[40:43]"
        e(f"v_mfma_f32_16x16x32_bf16 v[40:43], v[24:27], v[{64+4*i}:{67+4*i}], {c}")
    stamp()
    e("s_nop 7")
    e("buffer_store_dwordx4 v[40:43], v30, s[40:43], s55 offen sc1")
    e("s_waitcnt vmcnt(0)")
    stamp()
    e("s_mov_b32 exec_lo, 1")
    e("s_mov_b32 exec_hi, 0")
    e("buffer_atomic_add v29, v31, s[60:63], 0 offen")
    e("L_k1_poll:")
    e("buffer_load_dword v28, v31, s[60:63], 0 offen sc1")
    e("s_waitcnt vmcnt(0)")
    e("v_readfirstlane_b32 s59, v28")
    e("s_nop 3")
    e("s_cmp_ge_u32 s59, 8")
    e("s_cbranch_scc1 L_k1_polled")
    e("s_sleep 1")
    e("s_branch L_k1_poll")
    e("L_k1_polled:")
    e("s_mov_b64 exec, -1")
    stamp()
    for w in range(8):
        e(f"buffer_load_dwordx4 v[{208+4*w}:{211+4*w}], v30, s[40:43], s52 offen offset:{w*1024 if w < 4 else 0} sc1" if w < 4 else
          f"buffer_load_dwordx4 v[{208+4*w}:{211+4*w}], v30, s[40:43], s59 offen offset:{(w-4)*1024} sc1")
        if w == 3:
            e("s_add_u32 s59, s52, 4096")
    e("v_lshrrev_b32 v29, 1, v3")
    e("v_lshlrev_b32 v29, 8, v29")
    e("v_lshl_add_u32 v29, v2, 4, v29")
    e("v_and_b32 v30, 1, v3")
    e("v_lshl_add_u32 v29, v30, 3, v29")
    e("s_waitcnt vmcnt(0)")
    stamp()
    bulk_loads()
    for step in (4, 2, 1):
        for w in range(step):
            for i in range(4):
                e(f"v_add_f32 v{208+4*w+i}, v{208+4*w+i}, v{208+4*(w+step)+i}")
    e("v_cvt_pk_bf16_f32 v30, v208, v209")
    e("v_cvt_pk_bf16_f32 v31, v210, v211")
    e(f"ds_write_b64 v29, v[30:31] offset:{QBF}")
    e("s_waitcnt lgkmcnt(0)")
    stamp()
    e("L_k1_qready:")
    e("s_barrier")
    e("s_lshl_b32 s55, s47, 8")
    e("v_lshl_add_u32 v28, v3, 4, s55")
    for t in range(4):
        e(f"ds_read_b128 v[{44+4*t}:{47+4*t}], v28 offset:{QBF + t*64}")
    e("s_waitcnt lgkmcnt(0)")
    stamp()
    for T in range(2):
        for t in range(4):
            n = T * 4 + t
            e(f"s_waitcnt vmcnt({35 - n})")
            acc = f"v[{32+4*T}:{35+4*T}]"
            c = "0" if t == 0 else acc
            e(f"v_mfma_f32_16x16x32_bf16 {acc}, v[{144+4*n}:{147+4*n}], v[{44+4*t}:{47+4*t}], {c}")
    stamp()
    e("s_nop 7")
    e("v_max3_f32 v28, v32, v33, v34")
    e("v_max3_f32 v28, v28, v35, v36")
    e("v_max3_f32 v28, v28, v37, v38")
    e("v_max_f32 v28, v28, v39")
    e("s_nop 0")
    for k in range(4):
        e(f"v_readlane_b32 s{60+k}, v28, {16*k}")
    e("s_nop 1")
    e("v_mov_b32 v30, s60")
    for k in range(1, 4):
        e(f"v_max_f32 v30, s{60+k}, v30")
    e("v_mul_f32 v30, s58, v30")
    for j in range(8):
        e(f"v_fma_f32 v{32+j}, v{32+j}, s58, -v30")
    for j in range(8):
        e(f"v_exp_f32 v{32+j}, v{32+j}")
    e("s_nop 0")
    e("v_add_f32 v28, v32, v33")
    e("v_add_f32 v29, v34, v35")
    e("v_add_f32 v31, v36, v37")
    e("v_add_f32 v28, v28, v29")
    e("v_add_f32 v29, v38, v39")
    e("v_add_f32 v31, v31, v29")
    e("v_add_f32 v28, v28, v31")
    e("s_nop 0")
    for k in range(4):
        e(f"v_readlane_b32 s{60+k}, v28, {16*k}")
    e("s_nop 1")
    e("v_mov_b32 v31, s60")
    for k in range(1, 4):
        e(f"v_add_f32 v31, s{60+k}, v31")
    for n in range(8):
        e(f"v_cvt_pk_bf16_f32 v28, v{32+n}, v{32+n}")
        for r in range(4):
            e(f"v_and_b32 v{24+r}, v28, v{20+r}")
        e(f"s_waitcnt vmcnt({27 - n})")
        e("s_nop 0")
        c = "0" if n == 0 else "v[40:43]"
        e(f"v_mfma_f32_16x16x32_bf16 v[40:43], v[24:27], v[{176+4*n}:{179+4*n}], {c}")
    stamp()
    e("s_lshl_b32 s55, s46, 9")
    e("v_lshlrev_b32 v28, 5, v2")
    e("v_lshl_add_u32 v28, v3, 4, v28")
    e("v_add_u32 v28, s55, v28")
    e("s_lshl_b32 s55, s46, 3")
    e("v_mov_b32 v29, s55")
    e("s_nop 3")
    e("s_mov_b32 exec_lo, -1")
    e("s_mov_b32 exec_hi, 0")
    e(f"ds_write_b128 v28, v[40:43] offset:{OBUF}")
    e(f"ds_write_b64 v29, v[30:31] offset:{MLBUF}")
    e("s_mov_b64 exec, -1")
    e("s_waitcnt lgkmcnt(0)")
    e("s_barrier")
    stamp()
    e("v_lshrrev_b32 v9, 3, v2")
    e("v_lshlrev_b32 v28, 5, v9")
    e(f"ds_read_b128 v[208:211], v28 offset:{MLBUF}")
    e(f"ds_read_b128 v[212:215], v28 offset:{MLBUF+16}")
    e("s_lshl_b32 s55, s46, 6")
    e("v_lshlrev_b32 v29, 11, v9")
    e("v_lshl_add_u32 v29, v3, 4, v29")
    e("v_add_u32 v29, s55, v29")
    for k in range(4):
        e(f"ds_read_b128 v[{216+4*k}:{219+4*k}], v29 offset:{OBUF + k*512}")
    e("s_waitcnt lgkmcnt(0)" if INSTR else "s_waitcnt lgkmcnt(4)")
    e("v_max3_f32 v28, v208, v210, v212")
    e("v_max_f32 v28, v28, v214")
    for k in range(4):
        e(f"v_sub_f32 v{232+k}, v{208+2*k}, v28")
    for k in range(4):
        e(f"v_exp_f32 v{232+k}, v{232+k}")
    e("s_nop 0")
    e("v_mul_f32 v29, v232, v209")
    for k in range(1, 4):
        e(f"v_fmac_f32 v29, v{232+k}, v{209+2*k}")
    e("s_waitcnt lgkmcnt(0)")
    for j in range(4):
        e(f"v_mul_f32 v{236+j}, v232, v{216+j}")
    for k in range(1, 4):
        for j in range(4):
            e(f"v_fmac_f32 v{236+j}, v{232+k}, v{216+4*k+j}")
    for j in range(4):
        e(f"v_cvt_pk_bf16_f32 v30, v{236+j}, v{236+j}")
        for r in range(4):
            e(f"v_and_b32 v{240+4*j+r}, v30, v{20+r}")
    e("s_nop 1")
    for j in range(4):
        for cb in range(5):
            n = j * 5 + cb
            e(f"s_waitcnt vmcnt({19 - n})")
            acc = f"v[{144+4*cb}:{147+4*cb}]"
            c = "0" if j == 0 else acc
            e(f"v_mfma_f32_16x16x32_bf16 {acc}, v[{240+4*j}:{243+4*j}], v[{64+4*n}:{67+4*n}], {c}")
    stamp()
    e("s_mul_i32 s55, s46, 5120")
    e("v_lshl_add_u32 v30, v1, 4, s55")
    e("s_cmp_lg_u32 s46, 0")
    e("s_cbranch_scc1 L_k1_noml")
    e("s_lshl_b32 s55, s44, 3")
    e("s_add_u32 s55, s55, s45")
    e("s_lshl_b32 s55, s55, 3")
    e(f"s_add_u32 s55, s55, {ML_OFF}")
    e("v_lshlrev_b32 v31, 11, v9")
    e("s_mov_b32 exec_lo, 0x101")
    e("s_mov_b32 exec_hi, 0")
    e("buffer_store_dwordx2 v[28:29], v31, s[40:43], s55 offen")
    e("s_mov_b64 exec, -1")
    e("L_k1_noml:")
    e("s_nop 7")
    for cb in range(5):
        e(f"ds_write_b128 v30, v[{144+4*cb}:{147+4*cb}] offset:{YBUF + cb*1024}")
    e("s_waitcnt lgkmcnt(0)")
    e("s_barrier")
    stamp()
    if INSTR:
        e("s_waitcnt lgkmcnt(0)")
        e("s_lshl_b32 s55, s2, 10")
        e("s_lshl_b32 s59, s46, 7")
        e("s_add_u32 s55, s55, s59")
        e("s_add_u32 s55, s55, 0x200000")
        e("v_mov_b32 v29, 0")
        for k in range(STAMP[0]):
            e(f"v_mov_b32 v28, s{64+2*k}")
            e("s_mov_b32 exec_lo, 1")
            e("s_mov_b32 exec_hi, 0")
            e(f"buffer_store_dword v28, v29, s[40:43], s55 offen offset:{4*k}")
            e("s_mov_b64 exec, -1")
        e(f"v_mov_b32 v28, s96")
        e("s_mov_b32 exec_lo, 1")
        e("s_mov_b32 exec_hi, 0")
        e(f"buffer_store_dword v28, v29, s[40:43], s55 offen offset:{4*31}")
        e("s_mov_b64 exec, -1")
    e("s_cmp_ge_u32 s46, 5")
    e("s_cbranch_scc1 L_k1_end")
    e("v_lshlrev_b32 v28, 4, v0")
    for w in range(8):
        e(f"ds_read_b128 v[{208+4*w}:{211+4*w}], v28 offset:{YBUF + w*5120}")
    e("s_lshl_b32 s55, s44, 3")
    e("s_add_u32 s55, s55, s45")
    e("s_mul_i32 s55, s55, 5120")
    e("s_lshl_b32 s59, s46, 9")
    e("s_add_u32 s55, s55, s59")
    e("v_lshrrev_b32 v29, 1, v3")
    e("v_mul_u32_u24 v29, 2560, v29")
    e("v_lshl_add_u32 v29, v2, 5, v29")
    e("v_and_b32 v30, 1, v3")
    e("v_lshl_add_u32 v29, v30, 4, v29")
    e("s_waitcnt lgkmcnt(0)")
    for step in (4, 2, 1):
        for w in range(step):
            for i in range(4):
                e(f"v_add_f32 v{208+4*w+i}, v{208+4*w+i}, v{208+4*(w+step)+i}")
    e("buffer_store_dwordx4 v[208:211], v29, s[40:43], s55 offen")
    e("L_k1_end:")
    e("s_endpgm")
    return L


def k2():
    L = []
    e = L.append
    N = "final_reduce_kernel"
    e(".p2align 8")
    e(f".type {N},@function")
    e(f"{N}:")
    e("s_cmp_ge_u32 s2, 40")
    e("s_cbranch_scc1 L_k2_end")
    e("s_load_dwordx2 s[4:5], s[0:1], 40")
    e("s_load_dwordx2 s[6:7], s[0:1], 56")
    e("s_cmp_ge_u32 s2, 20")
    e("s_cselect_b32 s20, 1, 0")
    e("s_mul_i32 s21, s20, 20")
    e("s_sub_u32 s21, s2, s21")
    e("v_and_b32 v1, 7, v0")
    e("v_lshrrev_b32 v2, 3, v0")
    e("v_mul_u32_u24 v3, 40960, v2")
    e("v_lshl_add_u32 v3, v1, 4, v3")
    e("v_lshlrev_b32 v4, 6, v2")
    e("s_mul_i32 s22, s20, 2560")
    e("s_lshl_b32 s23, s21, 7")
    e("s_add_u32 s22, s22, s23")
    e("s_lshl_b32 s23, s20, 11")
    e(f"s_add_u32 s23, s23, {ML_OFF}")
    e("s_waitcnt lgkmcnt(0)")
    for d, b, sz in [(8, 4, 2560), (12, 6, ML_OFF + 4096)]:
        e(f"s_mov_b32 s{d}, s{b}")
        e(f"s_mov_b32 s{d+1}, s{b+1}")
        e(f"s_mov_b32 s{d+2}, {sz}")
        e(f"s_mov_b32 s{d+3}, 0x00020000")
    for k in range(4):
        e(f"buffer_load_dwordx4 v[{16+4*k}:{19+4*k}], v4, s[12:15], s23 offen offset:{16*k}")
    for s in range(8):
        e(f"buffer_load_dwordx4 v[{32+4*s}:{35+4*s}], v3, s[12:15], s22 offen")
        if s < 7:
            e("s_add_u32 s22, s22, 5120")
    e("s_waitcnt vmcnt(8)")
    e("v_max3_f32 v5, v16, v18, v20")
    e("v_max3_f32 v5, v5, v22, v24")
    e("v_max3_f32 v5, v5, v26, v28")
    e("v_max_f32 v5, v5, v30")
    for s in range(8):
        e(f"v_sub_f32 v{8+s}, v{16+2*s}, v5")
    for s in range(8):
        e(f"v_exp_f32 v{8+s}, v{8+s}")
    e("s_nop 0")
    e("v_mul_f32 v6, v8, v17")
    for s in range(1, 8):
        e(f"v_fmac_f32 v6, v{8+s}, v{17+2*s}")
    e("v_rcp_f32 v6, v6")
    e("s_nop 0")
    for s in range(8):
        e(f"v_mul_f32 v{8+s}, v{8+s}, v6")
    for s in range(8):
        e(f"s_waitcnt vmcnt({7 - s})")
        for i in range(4):
            if s == 0:
                e(f"v_mul_f32 v{64+i}, v8, v{32+i}")
            else:
                e(f"v_fmac_f32 v{64+i}, v{8+s}, v{32+4*s+i}")
    e("v_lshlrev_b32 v7, 4, v0")
    e("ds_write_b128 v7, v[64:67]")
    e("s_waitcnt lgkmcnt(0)")
    e("s_barrier")
    e("v_cmp_gt_u32 vcc, 32, v0")
    e("s_and_saveexec_b64 s[24:25], vcc")
    e("s_cbranch_execz L_k2_end")
    e("v_lshlrev_b32 v7, 2, v0")
    for h in range(32):
        e(f"ds_read_b32 v{16+h}, v7 offset:{h*128}")
    e("s_mul_i32 s26, s20, 1280")
    e("s_lshl_b32 s27, s21, 6")
    e("s_add_u32 s26, s26, s27")
    e("v_lshlrev_b32 v7, 1, v0")
    e("s_waitcnt lgkmcnt(0)")
    for step in (16, 8, 4, 2, 1):
        for h in range(step):
            e(f"v_add_f32 v{16+h}, v{16+h}, v{16+h+step}")
    e("v_cvt_pk_bf16_f32 v16, v16, v16")
    e("buffer_store_short v16, v7, s[8:11], s26 offen")
    e("L_k2_end:")
    e("s_endpgm")
    return L


def kd(name, vgpr, sgpr):
    acc = (vgpr + 3) // 4 * 4
    return f""".amdhsa_kernel {name}
  .amdhsa_next_free_vgpr {vgpr}
  .amdhsa_next_free_sgpr {sgpr}
  .amdhsa_accum_offset {acc}
  .amdhsa_group_segment_fixed_size 0
  .amdhsa_kernarg_size 64
  .amdhsa_user_sgpr_count 2
  .amdhsa_user_sgpr_kernarg_segment_ptr 1
  .amdhsa_system_sgpr_workgroup_id_x 1
.end_amdhsa_kernel
"""


def main():
    out = [HEADER.rstrip("\n")]
    out.append(f"; @launch kernel=standalone__sliding_block_cached__decode_kernel grid=(256,1,1) block=(512,1,1) lds={LDS1}")
    out.append("; @launch kernel=final_reduce_kernel grid=(40,1,1) block=(256,1,1) lds=4096")
    out.append('.amdgcn_target "amdgcn-amd-amdhsa--gfx950"')
    out.append(".text")
    out.append(".globl standalone__sliding_block_cached__decode_kernel")
    out.append(".globl final_reduce_kernel")
    out += k1()
    out += k2()
    out.append('.section .rodata,"a"')
    out.append(".p2align 6")
    out.append(kd("standalone__sliding_block_cached__decode_kernel", 256, 100 if INSTR else 72))
    out.append(".p2align 6")
    out.append(kd("final_reduce_kernel", 72, 40))
    sys.stdout.write("\n".join(out))


main()
```

```python
import sys
INSTR = 'instr' in sys.argv[1:]
STAMP = [0]
NTKV = ' nt' if 'ntkv' in sys.argv[1:] else ''
NTW = ' nt' if 'ntw' in sys.argv[1:] else ''

HEADER = """; Kernarg layout for this problem (64 bytes, ptrs only, base s[0:1]):
"""

QPART = 0
QBF = 8192
OBUF = 8704
MLBUF = 12800
YBUF = 13312
LDS1 = YBUF + 40960

ML_OFF = 256 * 5120


def k1():
    L = []
    e = L.append
    def stamp():
        if INSTR:
            k = STAMP[0]; STAMP[0] += 1
            e(f"s_memtime s[{64+2*k}:{65+2*k}]")
    N = "standalone__sliding_block_cached__decode_kernel"
    e(".p2align 8")
    e(f".type {N},@function")
    e(f"{N}:")
    e("s_cmp_ge_u32 s2, 256")
    e("s_cbranch_scc1 L_k1_end")
    e("s_load_dwordx16 s[4:19], s[0:1], 0")
    if INSTR: e("s_memrealtime s[96:97]")
    stamp()
    e("v_lshrrev_b32 v9, 6, v0")
    e("v_and_b32 v1, 63, v0")
    e("v_readfirstlane_b32 s46, v9")
    e("v_and_b32 v2, 15, v1")
    e("v_lshrrev_b32 v3, 4, v1")
    e("s_and_b32 s44, s2, 7")
    e("s_lshl_b32 s44, s44, 2")
    e("s_bfe_u32 s55, s2, 0x20003")
    e("s_or_b32 s44, s44, s55")
    e("s_lshr_b32 s45, s2, 5")
    e("v_mul_u32_u24 v4, 0x28000, v3")
    e("v_lshl_add_u32 v4, v2, 4, v4")
    e("v_lshrrev_b32 v9, 3, v2")
    e("v_mul_u32_u24 v5, 1280, v9")
    e("v_mul_u32_u24 v29, 40, v3")
    e("v_add_u32 v5, v5, v29")
    e("v_lshlrev_b32 v6, 8, v2")
    e("v_lshl_add_u32 v6, v3, 4, v6")
    e("v_lshlrev_b32 v7, 10, v3")
    e("v_lshl_add_u32 v7, v2, 4, v7")
    e("v_mul_u32_u24 v8, 5120, v3")
    e("v_lshl_add_u32 v8, v2, 4, v8")
    e("s_lshr_b32 s47, s46, 2")
    e("s_mul_i32 s48, s46, 655360")
    e("s_lshl_b32 s55, s44, 8")
    e("s_add_u32 s48, s48, s55")
    e("s_mul_i32 s51, s46, 160")
    e("s_lshl_b32 s49, s47, 5")
    e("s_add_u32 s49, s49, s44")
    e("s_lshl_b32 s49, s49, 20")
    e("s_add_u32 s49, s49, 786432")
    e("s_lshl_b32 s55, s45, 15")
    e("s_add_u32 s49, s49, s55")
    e("s_and_b32 s55, s46, 3")
    e("s_lshl_b32 s55, s55, 13")
    e("s_add_u32 s49, s49, s55")
    e("s_add_u32 s50, s49, 4096")
    e("s_lshl_b32 s53, s44, 7")
    e("s_lshl_b32 s55, s46, 4")
    e("s_add_u32 s53, s53, s55")
    e("s_mul_i32 s53, s53, 1280")
    e("s_add_u32 s54, s53, 2560")
    e("s_mov_b32 s56, 0x01000100")
    e("s_mov_b32 s57, 0x03020302")
    import math
    C = (128 ** -0.5) * math.log2(math.e)
    import struct
    Cbits = struct.unpack("<I", struct.pack("<f", C))[0]
    e(f"s_mov_b32 s58, 0x{Cbits:08x}")
    e("s_waitcnt lgkmcnt(0)")
    srds = [(20, 4, 2560), (24, 6, 67108864), (28, 8, 67108864), (32, 10, 5242880), (36, 12, 5242880), (40, 18, ML_OFF + 4096)]
    for d, b, sz in srds:
        e(f"s_mov_b32 s{d}, s{b}")
        e(f"s_mov_b32 s{d+1}, s{b+1}")
        e(f"s_mov_b32 s{d+2}, {sz}")
        e(f"s_mov_b32 s{d+3}, 0x00020000")
    stamp()
    for i in range(5):
        e(f"buffer_load_dwordx2 v[{10+2*i}:{11+2*i}], v5, s[20:23], s51 offen offset:{8*i}")
    for i in range(20):
        e(f"buffer_load_dwordx4 v[{64+4*i}:{67+4*i}], v4, s[32:35], s48 offen{NTW}")
        if i < 19:
            e("s_add_u32 s48, s48, 8192")
    for T in range(2):
        for t in range(4):
            n = T * 4 + t
            e(f"buffer_load_dwordx4 v[{144+4*n}:{147+4*n}], v6, s[24:27], s{49+T} offen offset:{t*64}{NTKV}")
    for T in range(2):
        for i in range(4):
            n = T * 4 + i
            e(f"buffer_load_dwordx4 v[{176+4*n}:{179+4*n}], v7, s[28:31], s{49+T} offen offset:{i*256}{NTKV}")
    stamp()
    e("v_and_b32 v28, 1, v2")
    e("v_lshlrev_b32 v28, 4, v28")
    e("v_mov_b32 v29, 0xffff")
    e("v_lshlrev_b32 v28, v28, v29")
    e("v_bfe_u32 v29, v2, 1, 2")
    for r in range(4):
        e(f"v_cmp_eq_u32 vcc, {r}, v29")
        e("s_nop 1")
        e(f"v_cndmask_b32 v{20+r}, 0, v28, vcc")
    e("s_waitcnt vmcnt(36)")
    for i in range(20):
        X = 10 + i // 2
        e(f"v_perm_b32 v28, v{X}, v{X}, s{56 + (i & 1)}")
        for r in range(4):
            e(f"v_and_b32 v{24+r}, v28, v{20+r}")
        e(f"s_waitcnt vmcnt({35 - i})")
        e("s_nop 0")
        c = "0" if i == 0 else "v[40:43]"
        e(f"v_mfma_f32_16x16x32_bf16 v[40:43], v[24:27], v[{64+4*i}:{67+4*i}], {c}")
    stamp()
    for j in range(4):
        for cb in range(5):
            n = j * 5 + cb
            e(f"buffer_load_dwordx4 v[{64+4*n}:{67+4*n}], v8, s[36:39], s{53 + j//2} offen offset:{(j%2)*1280 + cb*256}{NTW}")
    e("v_lshlrev_b32 v28, 4, v0")
    e(f"ds_write_b128 v28, v[40:43] offset:{QPART}")
    e("s_waitcnt lgkmcnt(0)")
    e("s_barrier")
    e("s_cmp_lg_u32 s46, 0")
    e("s_cbranch_scc1 L_k1_qred_done")
    for w in range(8):
        e(f"ds_read_b128 v[{208+4*w}:{211+4*w}], v28 offset:{QPART + w*1024}")
    e("v_lshrrev_b32 v29, 1, v3")
    e("v_lshlrev_b32 v29, 8, v29")
    e("v_lshl_add_u32 v29, v2, 4, v29")
    e("v_and_b32 v30, 1, v3")
    e("v_lshl_add_u32 v29, v30, 3, v29")
    e("s_waitcnt lgkmcnt(0)")
    for step in (4, 2, 1):
        for w in range(step):
            for i in range(4):
                e(f"v_add_f32 v{208+4*w+i}, v{208+4*w+i}, v{208+4*(w+step)+i}")
    e("v_cvt_pk_bf16_f32 v30, v208, v209")
    e("v_cvt_pk_bf16_f32 v31, v210, v211")
    e(f"ds_write_b64 v29, v[30:31] offset:{QBF}")
    e("s_waitcnt lgkmcnt(0)")
    e("L_k1_qred_done:")
    e("s_barrier")
    e("s_lshl_b32 s55, s47, 8")
    e("v_lshl_add_u32 v28, v3, 4, s55")
    for t in range(4):
        e(f"ds_read_b128 v[{44+4*t}:{47+4*t}], v28 offset:{QBF + t*64}")
    e("s_waitcnt lgkmcnt(0)")
    stamp()
    for T in range(2):
        for t in range(4):
            n = T * 4 + t
            e(f"s_waitcnt vmcnt({35 - n})")
            acc = f"v[{32+4*T}:{35+4*T}]"
            c = "0" if t == 0 else acc
            e(f"v_mfma_f32_16x16x32_bf16 {acc}, v[{144+4*n}:{147+4*n}], v[{44+4*t}:{47+4*t}], {c}")
    stamp()
    e("s_nop 7")
    e("v_max3_f32 v28, v32, v33, v34")
    e("v_max3_f32 v28, v28, v35, v36")
    e("v_max3_f32 v28, v28, v37, v38")
    e("v_max_f32 v28, v28, v39")
    e("s_nop 0")
    for k in range(4):
        e(f"v_readlane_b32 s{60+k}, v28, {16*k}")
    e("s_nop 1")
    e("v_mov_b32 v30, s60")
    for k in range(1, 4):
        e(f"v_max_f32 v30, s{60+k}, v30")
    e("v_mul_f32 v30, s58, v30")
    for j in range(8):
        e(f"v_fma_f32 v{32+j}, v{32+j}, s58, -v30")
    for j in range(8):
        e(f"v_exp_f32 v{32+j}, v{32+j}")
    e("s_nop 0")
    e("v_add_f32 v28, v32, v33")
    e("v_add_f32 v29, v34, v35")
    e("v_add_f32 v31, v36, v37")
    e("v_add_f32 v28, v28, v29")
    e("v_add_f32 v29, v38, v39")
    e("v_add_f32 v31, v31, v29")
    e("v_add_f32 v28, v28, v31")
    e("s_nop 0")
    for k in range(4):
        e(f"v_readlane_b32 s{60+k}, v28, {16*k}")
    e("s_nop 1")
    e("v_mov_b32 v31, s60")
    for k in range(1, 4):
        e(f"v_add_f32 v31, s{60+k}, v31")
    for n in range(8):
        e(f"v_cvt_pk_bf16_f32 v28, v{32+n}, v{32+n}")
        for r in range(4):
            e(f"v_and_b32 v{24+r}, v28, v{20+r}")
        e(f"s_waitcnt vmcnt({27 - n})")
        e("s_nop 0")
        c = "0" if n == 0 else "v[40:43]"
        e(f"v_mfma_f32_16x16x32_bf16 v[40:43], v[24:27], v[{176+4*n}:{179+4*n}], {c}")
    stamp()
    e("s_lshl_b32 s55, s46, 9")
    e("v_lshlrev_b32 v28, 5, v2")
    e("v_lshl_add_u32 v28, v3, 4, v28")
    e("v_add_u32 v28, s55, v28")
    e("s_lshl_b32 s55, s46, 3")
    e("v_mov_b32 v29, s55")
    e("s_nop 3")
    e("s_mov_b32 exec_lo, -1")
    e("s_mov_b32 exec_hi, 0")
    e(f"ds_write_b128 v28, v[40:43] offset:{OBUF}")
    e(f"ds_write_b64 v29, v[30:31] offset:{MLBUF}")
    e("s_mov_b64 exec, -1")
    e("s_waitcnt lgkmcnt(0)")
    e("s_barrier")
    stamp()
    e("v_lshrrev_b32 v9, 3, v2")
    e("v_lshlrev_b32 v28, 5, v9")
    e(f"ds_read_b128 v[208:211], v28 offset:{MLBUF}")
    e(f"ds_read_b128 v[212:215], v28 offset:{MLBUF+16}")
    e("s_lshl_b32 s55, s46, 6")
    e("v_lshlrev_b32 v29, 11, v9")
    e("v_lshl_add_u32 v29, v3, 4, v29")
    e("v_add_u32 v29, s55, v29")
    for k in range(4):
        e(f"ds_read_b128 v[{216+4*k}:{219+4*k}], v29 offset:{OBUF + k*512}")
    e("s_waitcnt lgkmcnt(0)" if INSTR else "s_waitcnt lgkmcnt(4)")
    e("v_max3_f32 v28, v208, v210, v212")
    e("v_max_f32 v28, v28, v214")
    for k in range(4):
        e(f"v_sub_f32 v{232+k}, v{208+2*k}, v28")
    for k in range(4):
        e(f"v_exp_f32 v{232+k}, v{232+k}")
    e("s_nop 0")
    e("v_mul_f32 v29, v232, v209")
    for k in range(1, 4):
        e(f"v_fmac_f32 v29, v{232+k}, v{209+2*k}")
    e("s_waitcnt lgkmcnt(0)")
    for j in range(4):
        e(f"v_mul_f32 v{236+j}, v232, v{216+j}")
    for k in range(1, 4):
        for j in range(4):
            e(f"v_fmac_f32 v{236+j}, v{232+k}, v{216+4*k+j}")
    for j in range(4):
        e(f"v_cvt_pk_bf16_f32 v30, v{236+j}, v{236+j}")
        for r in range(4):
            e(f"v_and_b32 v{240+4*j+r}, v30, v{20+r}")
    e("s_nop 1")
    for j in range(4):
        for cb in range(5):
            n = j * 5 + cb
            e(f"s_waitcnt vmcnt({19 - n})")
            acc = f"v[{144+4*cb}:{147+4*cb}]"
            c = "0" if j == 0 else acc
            e(f"v_mfma_f32_16x16x32_bf16 {acc}, v[{240+4*j}:{243+4*j}], v[{64+4*n}:{67+4*n}], {c}")
    stamp()
    e("s_mul_i32 s55, s46, 5120")
    e("v_lshl_add_u32 v30, v1, 4, s55")
    e("s_cmp_lg_u32 s46, 0")
    e("s_cbranch_scc1 L_k1_noml")
    e("s_lshl_b32 s55, s44, 3")
    e("s_add_u32 s55, s55, s45")
    e("s_lshl_b32 s55, s55, 3")
    e(f"s_add_u32 s55, s55, {ML_OFF}")
    e("v_lshlrev_b32 v31, 11, v9")
    e("s_mov_b32 exec_lo, 0x101")
    e("s_mov_b32 exec_hi, 0")
    e("buffer_store_dwordx2 v[28:29], v31, s[40:43], s55 offen")
    e("s_mov_b64 exec, -1")
    e("L_k1_noml:")
    e("s_nop 7")
    for cb in range(5):
        e(f"ds_write_b128 v30, v[{144+4*cb}:{147+4*cb}] offset:{YBUF + cb*1024}")
    e("s_waitcnt lgkmcnt(0)")
    e("s_barrier")
    stamp()
    if INSTR:
        e("s_waitcnt lgkmcnt(0)")
        e("s_mov_b32 s42, 0x10000000")
        e("s_lshl_b32 s55, s2, 10")
        e("s_lshl_b32 s59, s46, 7")
        e("s_add_u32 s55, s55, s59")
        e("s_add_u32 s55, s55, 0x200000")
        e("v_mov_b32 v29, 0")
        for k in range(STAMP[0]):
            e(f"v_mov_b32 v28, s{64+2*k}")
            e("s_mov_b32 exec_lo, 1")
            e("s_mov_b32 exec_hi, 0")
            e(f"buffer_store_dword v28, v29, s[40:43], s55 offen offset:{4*k}")
            e("s_mov_b64 exec, -1")
        e("s_getreg_b32 s97, hwreg(HW_REG_XCC_ID)")
        e(f"v_mov_b32 v28, s97")
        e("s_mov_b32 exec_lo, 1")
        e("s_mov_b32 exec_hi, 0")
        e(f"buffer_store_dword v28, v29, s[40:43], s55 offen offset:{4*30}")
        e("s_mov_b64 exec, -1")
        e("s_getreg_b32 s97, hwreg(HW_REG_HW_ID)")
        e(f"v_mov_b32 v28, s97")
        e("s_mov_b32 exec_lo, 1")
        e("s_mov_b32 exec_hi, 0")
        e(f"buffer_store_dword v28, v29, s[40:43], s55 offen offset:{4*29}")
        e("s_mov_b64 exec, -1")
        e(f"v_mov_b32 v28, s96")
        e("s_mov_b32 exec_lo, 1")
        e("s_mov_b32 exec_hi, 0")
        e(f"buffer_store_dword v28, v29, s[40:43], s55 offen offset:{4*31}")
        e("s_mov_b64 exec, -1")
    e("s_cmp_ge_u32 s46, 5")
    e("s_cbranch_scc1 L_k1_end")
    e("v_lshlrev_b32 v28, 4, v0")
    for w in range(8):
        e(f"ds_read_b128 v[{208+4*w}:{211+4*w}], v28 offset:{YBUF + w*5120}")
    e("s_lshl_b32 s55, s44, 3")
    e("s_add_u32 s55, s55, s45")
    e("s_mul_i32 s55, s55, 5120")
    e("s_lshl_b32 s59, s46, 9")
    e("s_add_u32 s55, s55, s59")
    e("v_lshrrev_b32 v29, 1, v3")
    e("v_mul_u32_u24 v29, 2560, v29")
    e("v_lshl_add_u32 v29, v2, 5, v29")
    e("v_and_b32 v30, 1, v3")
    e("v_lshl_add_u32 v29, v30, 4, v29")
    e("s_waitcnt lgkmcnt(0)")
    for step in (4, 2, 1):
        for w in range(step):
            for i in range(4):
                e(f"v_add_f32 v{208+4*w+i}, v{208+4*w+i}, v{208+4*(w+step)+i}")
    e("buffer_store_dwordx4 v[208:211], v29, s[40:43], s55 offen")
    e("L_k1_end:")
    e("s_endpgm")
    return L


def k2():
    L = []
    e = L.append
    N = "final_reduce_kernel"
    e(".p2align 8")
    e(f".type {N},@function")
    e(f"{N}:")
    e("s_cmp_ge_u32 s2, 40")
    e("s_cbranch_scc1 L_k2_end")
    e("s_load_dwordx2 s[4:5], s[0:1], 40")
    e("s_load_dwordx2 s[6:7], s[0:1], 56")
    e("s_cmp_ge_u32 s2, 20")
    e("s_cselect_b32 s20, 1, 0")
    e("s_mul_i32 s21, s20, 20")
    e("s_sub_u32 s21, s2, s21")
    e("v_and_b32 v1, 7, v0")
    e("v_lshrrev_b32 v2, 3, v0")
    e("v_mul_u32_u24 v3, 40960, v2")
    e("v_lshl_add_u32 v3, v1, 4, v3")
    e("v_lshlrev_b32 v4, 6, v2")
    e("s_mul_i32 s22, s20, 2560")
    e("s_lshl_b32 s23, s21, 7")
    e("s_add_u32 s22, s22, s23")
    e("s_lshl_b32 s23, s20, 11")
    e(f"s_add_u32 s23, s23, {ML_OFF}")
    e("s_waitcnt lgkmcnt(0)")
    for d, b, sz in [(8, 4, 2560), (12, 6, ML_OFF + 4096)]:
        e(f"s_mov_b32 s{d}, s{b}")
        e(f"s_mov_b32 s{d+1}, s{b+1}")
        e(f"s_mov_b32 s{d+2}, {sz}")
        e(f"s_mov_b32 s{d+3}, 0x00020000")
    for k in range(4):
        e(f"buffer_load_dwordx4 v[{16+4*k}:{19+4*k}], v4, s[12:15], s23 offen offset:{16*k}")
    for s in range(8):
        e(f"buffer_load_dwordx4 v[{32+4*s}:{35+4*s}], v3, s[12:15], s22 offen")
        if s < 7:
            e("s_add_u32 s22, s22, 5120")
    e("s_waitcnt vmcnt(8)")
    e("v_max3_f32 v5, v16, v18, v20")
    e("v_max3_f32 v5, v5, v22, v24")
    e("v_max3_f32 v5, v5, v26, v28")
    e("v_max_f32 v5, v5, v30")
    for s in range(8):
        e(f"v_sub_f32 v{8+s}, v{16+2*s}, v5")
    for s in range(8):
        e(f"v_exp_f32 v{8+s}, v{8+s}")
    e("s_nop 0")
    e("v_mul_f32 v6, v8, v17")
    for s in range(1, 8):
        e(f"v_fmac_f32 v6, v{8+s}, v{17+2*s}")
    e("v_rcp_f32 v6, v6")
    e("s_nop 0")
    for s in range(8):
        e(f"v_mul_f32 v{8+s}, v{8+s}, v6")
    for s in range(8):
        e(f"s_waitcnt vmcnt({7 - s})")
        for i in range(4):
            if s == 0:
                e(f"v_mul_f32 v{64+i}, v8, v{32+i}")
            else:
                e(f"v_fmac_f32 v{64+i}, v{8+s}, v{32+4*s+i}")
    e("v_lshlrev_b32 v7, 4, v0")
    e("ds_write_b128 v7, v[64:67]")
    e("s_waitcnt lgkmcnt(0)")
    e("s_barrier")
    e("v_cmp_gt_u32 vcc, 32, v0")
    e("s_and_saveexec_b64 s[24:25], vcc")
    e("s_cbranch_execz L_k2_end")
    e("v_lshlrev_b32 v7, 2, v0")
    for h in range(32):
        e(f"ds_read_b32 v{16+h}, v7 offset:{h*128}")
    e("s_mul_i32 s26, s20, 1280")
    e("s_lshl_b32 s27, s21, 6")
    e("s_add_u32 s26, s26, s27")
    e("v_lshlrev_b32 v7, 1, v0")
    e("s_waitcnt lgkmcnt(0)")
    for step in (16, 8, 4, 2, 1):
        for h in range(step):
            e(f"v_add_f32 v{16+h}, v{16+h}, v{16+h+step}")
    e("v_cvt_pk_bf16_f32 v16, v16, v16")
    e("buffer_store_short v16, v7, s[8:11], s26 offen")
    e("L_k2_end:")
    e("s_endpgm")
    return L


def kd(name, vgpr, sgpr):
    acc = (vgpr + 3) // 4 * 4
    return f""".amdhsa_kernel {name}
  .amdhsa_next_free_vgpr {vgpr}
  .amdhsa_next_free_sgpr {sgpr}
  .amdhsa_accum_offset {acc}
  .amdhsa_group_segment_fixed_size 0
  .amdhsa_kernarg_size 64
  .amdhsa_user_sgpr_count 2
  .amdhsa_user_sgpr_kernarg_segment_ptr 1
  .amdhsa_system_sgpr_workgroup_id_x 1
.end_amdhsa_kernel
"""


def main():
    out = [HEADER.rstrip("\n")]
    out.append(f"; @launch kernel=standalone__sliding_block_cached__decode_kernel grid=(256,1,1) block=(512,1,1) lds={LDS1}")
    out.append("; @launch kernel=final_reduce_kernel grid=(40,1,1) block=(256,1,1) lds=4096")
    out.append('.amdgcn_target "amdgcn-amd-amdhsa--gfx950"')
    out.append(".text")
    out.append(".globl standalone__sliding_block_cached__decode_kernel")
    out.append(".globl final_reduce_kernel")
    out += k1()
    out += k2()
    out.append('.section .rodata,"a"')
    out.append(".p2align 6")
    out.append(kd("standalone__sliding_block_cached__decode_kernel", 256, 100))
    out.append(".p2align 6")
    out.append(kd("final_reduce_kernel", 72, 40))
    sys.stdout.write("\n".join(out))


main()
```

```python
import sys, math, struct
ARGS = sys.argv[1:]
INSTR = 'instr' in ARGS
def opt(name, default):
    for a in ARGS:
        if a.startswith(name + "="):
            return int(a.split("=")[1])
    return default
WIN = opt("win", 0)
SLEEP = opt('sleep', 8)
SLEEPO = opt('sleepo', 0)
NFAST = opt('nfast', 6)
NOA = 'noa' in ARGS
NT = '' if 'nont' in ARGS else ' nt'

HEADER = """; Kernarg layout for this problem (64 bytes, ptrs only, base s[0:1]):
"""

QBF = 0
OBUF = 512
MLBUF = 2560
LDS1 = 4096

Y_SIZE = 256 * 5120
QX_OFF = Y_SIZE
BOFF = 256 * 2048
OX_OFF = QX_OFF + 2 * BOFF
WS_SIZE = OX_OFF + 2 * BOFF
NSTAMP = 12


def k1():
    L = []
    e = L.append
    st = [0]

    def stamp(k):
        if INSTR:
            e(f"s_memtime s[{64+2*k}:{65+2*k}]")

    def dump_stamps(n):
        if not INSTR:
            return
        e("s_waitcnt lgkmcnt(0)")
        e("s_lshl_b32 s55, s2, 10")
        e("s_lshl_b32 s59, s46, 7")
        e("s_add_u32 s55, s55, s59")
        e("s_add_u32 s55, s55, 0x400000")
        e("v_mov_b32 v29, 0")
        e("s_mov_b32 exec_lo, 1")
        e("s_mov_b32 exec_hi, 0")
        for k in range(n):
            e(f"v_mov_b32 v28, s{64+2*k}")
            e(f"buffer_store_dword v28, v29, s[40:43], s55 offen offset:{4*k}")
        e(f"v_mov_b32 v28, s96")
        e(f"buffer_store_dword v28, v29, s[40:43], s55 offen offset:{4*31}")
        e("s_mov_b64 exec, -1")

    def masks():
        e("v_and_b32 v28, 1, v2")
        e("v_lshlrev_b32 v28, 4, v28")
        e("v_mov_b32 v29, 0xffff")
        e("v_lshlrev_b32 v28, v28, v29")
        e("v_bfe_u32 v29, v2, 1, 2")
        for r in range(4):
            e(f"v_cmp_eq_u32 vcc, {r}, v29")
            e("s_nop 1")
            e(f"v_cndmask_b32 v{20+r}, 0, v28, vcc")

    def srd(d, b, sz):
        e(f"s_mov_b32 s{d}, s{b}")
        e(f"s_mov_b32 s{d+1}, s{b+1}")
        e(f"s_mov_b32 s{d+2}, {sz}")
        e(f"s_mov_b32 s{d+3}, 0x00020000")

    def poll_nonce(lbl):
        e(f"{lbl}:")
        e("buffer_load_dword v28, v31, s[60:63], 0 offen sc1")
        e("s_waitcnt vmcnt(0)")
        e("v_readfirstlane_b32 s59, v28")
        e("s_nop 3")
        e("s_cmp_eq_u32 s59, 0")
        e(f"s_cbranch_scc1 {lbl}")

    def exchange(lbl, sbase, sown, vbase, voff, tags, pub, sleep):
        if not NOA: pub(sown, "")
        e("s_mov_b32 s90, 0")
        e("s_mov_b32 s91, 0")
        for p in range(8):
            e(f"s_add_u32 s{80+p}, {sbase}, {(p//2)*4096}")
        e(f"{lbl}:")
        for p in range(8):
            e(f"buffer_load_dwordx4 v[{vbase+8*p}:{vbase+3+8*p}], v{voff}, s[40:43], s{80+p} offen offset:{(p%2)*2048} sc1")
            e(f"buffer_load_dwordx4 v[{vbase+4+8*p}:{vbase+7+8*p}], v{voff}, s[40:43], s{80+p} offen offset:{(p%2)*2048+16} sc1")
        e("s_waitcnt vmcnt(0)")
        check_tags(tags, f"{lbl}_retry")
        e(f"s_branch {lbl}_ok")
        e(f"{lbl}_retry:")
        e("s_add_u32 s90, s90, 1")
        e(f"s_cmp_lt_u32 s90, {NFAST}")
        e(f"s_cbranch_scc1 {lbl}_sl")
        e("s_cmp_lg_u32 s91, 0")
        e(f"s_cbranch_scc1 {lbl}_pubd")
        e(f"s_add_u32 s92, {sown}, {BOFF}")
        pub("s92", " sc1")
        e("s_mov_b32 s91, 1")
        e(f"{lbl}_pubd:")
        e("v_and_b32 v27, 7, v1")
        e("v_lshlrev_b32 v27, 11, v27")
        e("v_lshrrev_b32 v26, 3, v1")
        e("v_lshlrev_b32 v26, 19, v26")
        e("v_add_u32 v27, v27, v26")
        e("s_mov_b32 exec_lo, 0xffff")
        e("s_mov_b32 exec_hi, 0")
        e(f"buffer_load_dword v28, v27, s[40:43], {sbase} offen offset:2044 sc1")
        e("s_waitcnt vmcnt(0)")
        e("v_cmp_eq_u32 vcc, s59, v28")
        e("s_nop 1")
        e("s_mov_b32 s88, vcc_lo")
        e("s_mov_b64 exec, -1")
        for p in range(8):
            e(f"s_bitcmp1_b32 s88, {8+p}")
            e(f"s_cselect_b32 s{80+p}, {BOFF}, 0")
            e(f"s_add_u32 s{80+p}, s{80+p}, {sbase}")
            if p >= 2:
                e(f"s_add_u32 s{80+p}, s{80+p}, {(p//2)*4096}")
        e(f"{lbl}_sl:")
        if sleep:
            e(f"s_sleep {sleep}")
        e(f"s_branch {lbl}")
        e(f"{lbl}_ok:")
        e("s_cmp_lg_u32 s91, 0")
        e(f"s_cbranch_scc1 {lbl}_done")
        e(f"s_add_u32 s92, {sown}, {BOFF}")
        pub("s92", " sc1")
        e(f"{lbl}_done:")

    def check_tags(tags, lbl):
        e(f"v_min3_u32 v28, v{tags[0]}, v{tags[1]}, v{tags[2]}")
        e(f"v_max3_u32 v29, v{tags[0]}, v{tags[1]}, v{tags[2]}")
        rest = tags[3:]
        while len(rest) >= 2:
            e(f"v_min3_u32 v28, v28, v{rest[0]}, v{rest[1]}")
            e(f"v_max3_u32 v29, v29, v{rest[0]}, v{rest[1]}")
            rest = rest[2:]
        if rest:
            e(f"v_min_u32 v28, v28, v{rest[0]}")
            e(f"v_max_u32 v29, v29, v{rest[0]}")
        e("v_xor_b32 v28, s59, v28")
        e("v_xor_b32 v29, s59, v29")
        e("v_or_b32 v28, v28, v29")
        e("v_cmp_ne_u32 vcc, 0, v28")
        e("s_nop 1")
        e("s_cmp_lg_u64 vcc, 0")
        e(f"s_cbranch_scc1 {lbl}")

    N = "standalone__sliding_block_cached__decode_kernel"
    e(".p2align 8")
    e(f".type {N},@function")
    e(f"{N}:")
    e("s_cmp_ge_u32 s2, 256")
    e("s_cbranch_scc1 L_k1_end")
    e("s_load_dwordx16 s[4:19], s[0:1], 0")
    e("s_memrealtime s[96:97]")
    stamp(0)
    e("v_lshrrev_b32 v9, 6, v0")
    e("v_and_b32 v1, 63, v0")
    e("v_readfirstlane_b32 s46, v9")
    e("v_and_b32 v2, 15, v1")
    e("v_lshrrev_b32 v3, 4, v1")
    e("s_and_b32 s44, s2, 7")
    e("s_lshl_b32 s44, s44, 2")
    e("s_bfe_u32 s55, s2, 0x20003")
    e("s_or_b32 s44, s44, s55")
    e("s_lshr_b32 s45, s2, 5")
    e("v_mov_b32 v31, 0")
    e("s_cmp_eq_u32 s46, 4")
    e("s_cbranch_scc1 L_k1_hq")
    e("s_cmp_eq_u32 s46, 5")
    e("s_cbranch_scc1 L_k1_ho")
    e("v_lshlrev_b32 v6, 8, v2")
    e("v_lshl_add_u32 v6, v3, 4, v6")
    e("v_lshlrev_b32 v7, 10, v3")
    e("v_lshl_add_u32 v7, v2, 4, v7")
    e("s_lshr_b32 s47, s46, 1")
    e("s_lshl_b32 s49, s47, 5")
    e("s_add_u32 s49, s49, s44")
    e("s_lshl_b32 s49, s49, 20")
    e("s_add_u32 s49, s49, 786432")
    e("s_lshl_b32 s55, s45, 15")
    e("s_add_u32 s49, s49, s55")
    e("s_and_b32 s55, s46, 1")
    e("s_lshl_b32 s55, s55, 14")
    e("s_add_u32 s49, s49, s55")
    e("s_add_u32 s50, s49, 4096")
    e("s_add_u32 s51, s49, 8192")
    e("s_add_u32 s52, s49, 12288")
    C = (128 ** -0.5) * math.log2(math.e)
    Cbits = struct.unpack("<I", struct.pack("<f", C))[0]
    e(f"s_mov_b32 s58, 0x{Cbits:08x}")
    e("s_waitcnt lgkmcnt(0)")
    srd(24, 6, 67108864)
    srd(28, 8, 67108864)
    if INSTR:
        srd(40, 18, 0x10000000)
    stamp(1)
    e("s_barrier")
    cnt = [0]
    def pace():
        if WIN and cnt[0] >= WIN:
            e(f"s_waitcnt vmcnt({WIN-1})")
        cnt[0] += 1
    for T in range(4):
        for t in range(4):
            n = T * 4 + t
            pace()
            e(f"buffer_load_dwordx4 v[{64+4*n}:{67+4*n}], v6, s[24:27], s{49+T} offen offset:{t*64}{NT}")
    for T in range(4):
        for i in range(4):
            n = T * 4 + i
            pace()
            e(f"buffer_load_dwordx4 v[{128+4*n}:{131+4*n}], v7, s[28:31], s{49+T} offen offset:{i*256}{NT}")
    masks()
    stamp(2)
    e("s_barrier")
    e("s_lshl_b32 s55, s47, 8")
    e("v_lshl_add_u32 v28, v3, 4, s55")
    for t in range(4):
        e(f"ds_read_b128 v[{44+4*t}:{47+4*t}], v28 offset:{QBF + t*64}")
    e("s_waitcnt lgkmcnt(0)")
    stamp(3)
    for T in range(4):
        for t in range(4):
            n = T * 4 + t
            e(f"s_waitcnt vmcnt({31 - n})")
            acc = f"v[{192+4*T}:{195+4*T}]"
            c = "0" if t == 0 else acc
            e(f"v_mfma_f32_16x16x32_bf16 {acc}, v[{64+4*n}:{67+4*n}], v[{44+4*t}:{47+4*t}], {c}")
    stamp(4)
    e("s_nop 7")
    e("v_max3_f32 v28, v192, v193, v194")
    for k in range(195, 207, 2):
        e(f"v_max3_f32 v28, v28, v{k}, v{k+1}")
    e("v_max_f32 v28, v28, v207")
    e("s_nop 0")
    for k in range(4):
        e(f"v_readlane_b32 s{60+k}, v28, {16*k}")
    e("s_nop 1")
    e("v_mov_b32 v30, s60")
    for k in range(1, 4):
        e(f"v_max_f32 v30, s{60+k}, v30")
    e("v_mul_f32 v30, s58, v30")
    for j in range(16):
        e(f"v_fma_f32 v{192+j}, v{192+j}, s58, -v30")
    for j in range(16):
        e(f"v_exp_f32 v{192+j}, v{192+j}")
    e("s_nop 0")
    for j in range(8):
        e(f"v_add_f32 v{208+j}, v{192+2*j}, v{193+2*j}")
    for j in range(4):
        e(f"v_add_f32 v{208+j}, v{208+j}, v{212+j}")
    e("v_add_f32 v208, v208, v210")
    e("v_add_f32 v209, v209, v211")
    e("v_add_f32 v28, v208, v209")
    e("s_nop 0")
    for k in range(4):
        e(f"v_readlane_b32 s{60+k}, v28, {16*k}")
    e("s_nop 1")
    e("v_mov_b32 v31, s60")
    for k in range(1, 4):
        e(f"v_add_f32 v31, s{60+k}, v31")
    for n in range(16):
        e(f"v_cvt_pk_bf16_f32 v28, v{192+n}, v{192+n}")
        for r in range(4):
            e(f"v_and_b32 v{24+r}, v28, v{20+r}")
        e(f"s_waitcnt vmcnt({15 - n})")
        e("s_nop 0")
        c = "0" if n == 0 else "v[40:43]"
        e(f"v_mfma_f32_16x16x32_bf16 v[40:43], v[24:27], v[{128+4*n}:{131+4*n}], {c}")
    stamp(5)
    e("s_lshl_b32 s55, s46, 9")
    e("v_lshlrev_b32 v28, 5, v2")
    e("v_lshl_add_u32 v28, v3, 4, v28")
    e("v_add_u32 v28, s55, v28")
    e("s_lshl_b32 s55, s46, 3")
    e("v_mov_b32 v29, s55")
    e("s_nop 3")
    e("s_mov_b32 exec_lo, -1")
    e("s_mov_b32 exec_hi, 0")
    e(f"ds_write_b128 v28, v[40:43] offset:{OBUF}")
    e(f"ds_write_b64 v29, v[30:31] offset:{MLBUF}")
    e("s_mov_b64 exec, -1")
    e("s_waitcnt lgkmcnt(0)")
    e("s_barrier")
    stamp(6)
    dump_stamps(7)
    e("s_endpgm")

    e("L_k1_hq:")
    e("v_mul_u32_u24 v4, 0x28000, v3")
    e("v_lshl_add_u32 v4, v2, 4, v4")
    e("v_lshrrev_b32 v9, 3, v2")
    e("v_mul_u32_u24 v5, 1280, v9")
    e("v_mul_u32_u24 v29, 40, v3")
    e("v_add_u32 v5, v5, v29")
    e("s_mul_i32 s48, s45, 655360")
    e("s_lshl_b32 s55, s44, 8")
    e("s_add_u32 s48, s48, s55")
    e("s_mul_i32 s51, s45, 160")
    e("s_mov_b32 s56, 0x01000100")
    e("s_mov_b32 s57, 0x03020302")
    e("s_waitcnt lgkmcnt(0)")
    srd(20, 4, 2560)
    srd(32, 10, 5242880)
    stamp(1)
    for i in range(5):
        e(f"buffer_load_dwordx2 v[{10+2*i}:{11+2*i}], v5, s[20:23], s51 offen offset:{8*i}")
    for i in range(20):
        e(f"buffer_load_dwordx4 v[{64+4*i}:{67+4*i}], v4, s[32:35], s48 offen{NT}")
        if i < 19:
            e("s_add_u32 s48, s48, 8192")
    srd(60, 16, 256)
    e("buffer_load_dword v32, v31, s[60:63], 0 offen sc1")
    e("s_barrier")
    srd(40, 18, 0x10000000 if INSTR else WS_SIZE)
    masks()
    e("s_lshl_b32 s52, s44, 14")
    e(f"s_add_u32 s52, s52, {QX_OFF}")
    e("s_lshl_b32 s55, s45, 11")
    e("s_add_u32 s55, s55, s52")
    e("v_lshlrev_b32 v30, 5, v1")
    e("s_waitcnt vmcnt(21)")
    for i in range(20):
        X = 10 + i // 2
        e(f"v_perm_b32 v28, v{X}, v{X}, s{56 + (i & 1)}")
        for r in range(4):
            e(f"v_and_b32 v{24+r}, v28, v{20+r}")
        e(f"s_waitcnt vmcnt({20 - i})")
        e("s_nop 0")
        c = "0" if i == 0 else "v[40:43]"
        e(f"v_mfma_f32_16x16x32_bf16 v[40:43], v[24:27], v[{64+4*i}:{67+4*i}], {c}")
    stamp(2)
    e("s_waitcnt vmcnt(0)")
    e("v_readfirstlane_b32 s59, v32")
    e("s_nop 3")
    e("s_cmp_lg_u32 s59, 0")
    e("s_cbranch_scc1 L_k1_have_nonce")
    poll_nonce("L_k1_npoll_q")
    e("L_k1_have_nonce:")
    stamp(3)
    for i in range(4):
        e(f"v_mov_b32 v{208+2*i}, v{40+i}")
        e(f"v_mov_b32 v{209+2*i}, s59")
    def pubq(soff, fl):
        e(f"buffer_store_dwordx4 v[208:211], v30, s[40:43], {soff} offen{fl}")
        e(f"buffer_store_dwordx4 v[212:215], v30, s[40:43], {soff} offen offset:16{fl}")
    exchange("L_k1_xq", "s52", "s55", 64, 30, [64 + 4 * q + k for q in range(16) for k in (1, 3)], pubq, SLEEP)
    stamp(4)
    for i, off in enumerate((0, 2, 4, 6)):
        e(f"v_add_f32 v{224+i}, v{64+off}, v{72+off}")
        e(f"v_add_f32 v{228+i}, v{80+off}, v{88+off}")
        e(f"v_add_f32 v{216+i}, v{96+off}, v{104+off}")
        e(f"v_add_f32 v{220+i}, v{112+off}, v{120+off}")
    for i in range(4):
        e(f"v_add_f32 v{224+i}, v{224+i}, v{228+i}")
        e(f"v_add_f32 v{216+i}, v{216+i}, v{220+i}")
    for i in range(4):
        e(f"v_add_f32 v{224+i}, v{224+i}, v{216+i}")
    e("v_lshrrev_b32 v29, 1, v3")
    e("v_lshlrev_b32 v29, 8, v29")
    e("v_lshl_add_u32 v29, v2, 4, v29")
    e("v_and_b32 v34, 1, v3")
    e("v_lshl_add_u32 v29, v34, 3, v29")
    e("v_cvt_pk_bf16_f32 v32, v224, v225")
    e("v_cvt_pk_bf16_f32 v33, v226, v227")
    e(f"ds_write_b64 v29, v[32:33] offset:{QBF}")
    e("s_waitcnt lgkmcnt(0)")
    e("s_barrier")
    stamp(5)
    dump_stamps(6)
    e("s_endpgm")

    e("L_k1_ho:")
    e("v_mul_u32_u24 v8, 5120, v3")
    e("v_lshl_add_u32 v8, v2, 4, v8")
    e("s_lshl_b32 s53, s44, 7")
    e("s_lshl_b32 s55, s45, 4")
    e("s_add_u32 s53, s53, s55")
    e("s_mul_i32 s53, s53, 1280")
    e("s_add_u32 s54, s53, 2560")
    e("s_waitcnt lgkmcnt(0)")
    srd(60, 16, 256)
    srd(36, 12, 5242880)
    srd(40, 18, 0x10000000 if INSTR else WS_SIZE)
    stamp(1)
    e("s_cmp_lg_u32 s2, 0")
    e("s_cbranch_scc1 L_k1_nonice")
    e("s_or_b32 s96, s96, 1")
    e("v_mov_b32 v30, s96")
    e("s_mov_b32 exec_lo, 1")
    e("s_mov_b32 exec_hi, 0")
    e("buffer_store_dword v30, v31, s[60:63], 0 offen sc1")
    e("s_mov_b64 exec, -1")
    e("L_k1_nonice:")
    e("s_barrier")
    for j in range(4):
        for cb in range(5):
            n = j * 5 + cb
            e(f"buffer_load_dwordx4 v[{64+4*n}:{67+4*n}], v8, s[36:39], s{53 + j//2} offen offset:{(j%2)*1280 + cb*256}{NT}")
    masks()
    e("s_lshl_b32 s52, s44, 14")
    e(f"s_add_u32 s52, s52, {OX_OFF}")
    e("s_lshl_b32 s55, s45, 11")
    e("s_add_u32 s56, s55, s52")
    e("v_lshlrev_b32 v30, 5, v1")
    e("v_lshrrev_b32 v9, 3, v2")
    e("v_lshlrev_b32 v10, 10, v9")
    e("v_lshl_add_u32 v10, v3, 5, v10")
    e("s_lshl_b32 s55, s45, 7")
    e("v_add_u32 v10, s55, v10")
    e("v_lshrrev_b32 v11, 5, v1")
    e("v_and_b32 v12, 31, v1")
    e("v_lshlrev_b32 v13, 10, v11")
    e("v_lshl_add_u32 v13, v12, 4, v13")
    e("v_lshlrev_b32 v14, 4, v11")
    e("s_lshl_b32 s57, s44, 3")
    e("s_add_u32 s57, s57, s45")
    e("s_mul_i32 s57, s57, 5120")
    e("v_lshrrev_b32 v15, 1, v3")
    e("v_mul_u32_u24 v15, 2560, v15")
    e("v_lshl_add_u32 v15, v2, 5, v15")
    e("v_and_b32 v16, 1, v3")
    e("v_lshl_add_u32 v15, v16, 4, v15")
    poll_nonce("L_k1_npoll_o")
    stamp(2)
    e("s_barrier")
    e("s_barrier")
    stamp(3)
    e(f"ds_read_b128 v[208:211], v14 offset:{MLBUF}")
    e(f"ds_read_b128 v[212:215], v13 offset:{OBUF}")
    e(f"ds_read_b128 v[216:219], v13 offset:{OBUF+512}")
    e("s_waitcnt lgkmcnt(0)")
    e("v_max_f32 v221, v208, v210")
    e("v_sub_f32 v224, v208, v221")
    e("v_sub_f32 v225, v210, v221")
    e("v_exp_f32 v224, v224")
    e("v_exp_f32 v225, v225")
    e("s_nop 0")
    e("v_mul_f32 v222, v224, v209")
    e("v_fmac_f32 v222, v225, v211")
    e("v_mul_f32 v228, v224, v212")
    e("v_mul_f32 v229, v224, v213")
    e("v_mul_f32 v230, v224, v214")
    e("v_mul_f32 v220, v224, v215")
    e("v_fmac_f32 v228, v225, v216")
    e("v_fmac_f32 v229, v225, v217")
    e("v_fmac_f32 v230, v225, v218")
    e("v_fmac_f32 v220, v225, v219")
    e("v_mov_b32 v231, s59")
    e("v_mov_b32 v223, s59")
    stamp(4)
    def pubo(soff, fl):
        e(f"buffer_store_dwordx4 v[228:231], v30, s[40:43], {soff} offen{fl}")
        e(f"buffer_store_dwordx4 v[220:223], v30, s[40:43], {soff} offen offset:16{fl}")
    exchange("L_k1_xo", "s52", "s56", 144, 10, [144 + 4 * q + 3 for q in range(16)], pubo, SLEEPO)
    stamp(5)
    Ms = [149 + 8 * p for p in range(8)]
    e(f"v_max3_f32 v28, v{Ms[0]}, v{Ms[1]}, v{Ms[2]}")
    e(f"v_max3_f32 v28, v28, v{Ms[3]}, v{Ms[4]}")
    e(f"v_max3_f32 v28, v28, v{Ms[5]}, v{Ms[6]}")
    e(f"v_max_f32 v28, v28, v{Ms[7]}")
    for p in range(8):
        e(f"v_sub_f32 v{208+p}, v{Ms[p]}, v28")
    for p in range(8):
        e(f"v_exp_f32 v{208+p}, v{208+p}")
    e("s_nop 0")
    e(f"v_mul_f32 v29, v208, v150")
    for p in range(1, 8):
        e(f"v_fmac_f32 v29, v{208+p}, v{150+8*p}")
    e("v_rcp_f32 v29, v29")
    offs = (0, 1, 2, 4)
    for j in range(4):
        e(f"v_mul_f32 v{216+j}, v208, v{144+offs[j]}")
    for p in range(1, 8):
        for j in range(4):
            e(f"v_fmac_f32 v{216+j}, v{208+p}, v{144+8*p+offs[j]}")
    for j in range(4):
        e(f"v_mul_f32 v{216+j}, v{216+j}, v29")
    for j in range(4):
        e(f"v_cvt_pk_bf16_f32 v28, v{216+j}, v{216+j}")
        for r in range(4):
            e(f"v_and_b32 v{240+4*j+r}, v28, v{20+r}")
    e("s_nop 1")
    for j in range(4):
        for cb in range(5):
            n = j * 5 + cb
            acc = f"v[{32+4*cb}:{35+4*cb}]"
            c = "0" if j == 0 else acc
            e(f"v_mfma_f32_16x16x32_bf16 {acc}, v[{240+4*j}:{243+4*j}], v[{64+4*n}:{67+4*n}], {c}")
    e("s_nop 3")
    for cb in range(5):
        e(f"buffer_store_dwordx4 v[{32+4*cb}:{35+4*cb}], v15, s[40:43], s57 offen offset:{cb*512}")
    stamp(6)
    dump_stamps(7)
    e("L_k1_end:")
    e("s_endpgm")
    return L


def k2():
    L = []
    e = L.append
    N = "final_reduce_kernel"
    e(".p2align 8")
    e(f".type {N},@function")
    e(f"{N}:")
    e("s_cmp_ge_u32 s2, 40")
    e("s_cbranch_scc1 L_k2_end")
    e("s_load_dwordx2 s[4:5], s[0:1], 40")
    e("s_load_dwordx2 s[6:7], s[0:1], 56")
    e("s_cmp_ge_u32 s2, 20")
    e("s_cselect_b32 s20, 1, 0")
    e("s_mul_i32 s21, s20, 20")
    e("s_sub_u32 s21, s2, s21")
    e("v_and_b32 v1, 7, v0")
    e("v_lshrrev_b32 v2, 3, v0")
    e("v_mul_u32_u24 v3, 40960, v2")
    e("v_lshl_add_u32 v3, v1, 4, v3")
    e("s_mul_i32 s22, s20, 2560")
    e("s_lshl_b32 s23, s21, 7")
    e("s_add_u32 s22, s22, s23")
    e("s_waitcnt lgkmcnt(0)")
    for d, b, sz in [(8, 4, 2560), (12, 6, Y_SIZE)]:
        e(f"s_mov_b32 s{d}, s{b}")
        e(f"s_mov_b32 s{d+1}, s{b+1}")
        e(f"s_mov_b32 s{d+2}, {sz}")
        e(f"s_mov_b32 s{d+3}, 0x00020000")
    for s in range(8):
        e(f"buffer_load_dwordx4 v[{32+4*s}:{35+4*s}], v3, s[12:15], s22 offen")
        if s < 7:
            e("s_add_u32 s22, s22, 5120")
    e("v_lshlrev_b32 v7, 4, v0")
    e("s_waitcnt vmcnt(0)")
    for step in (4, 2, 1):
        for s in range(step):
            for i in range(4):
                e(f"v_add_f32 v{32+4*s+i}, v{32+4*s+i}, v{32+4*(s+step)+i}")
    e("ds_write_b128 v7, v[32:35]")
    e("s_waitcnt lgkmcnt(0)")
    e("s_barrier")
    e("v_cmp_gt_u32 vcc, 32, v0")
    e("s_and_saveexec_b64 s[24:25], vcc")
    e("s_cbranch_execz L_k2_end")
    e("v_lshlrev_b32 v7, 2, v0")
    for h in range(32):
        e(f"ds_read_b32 v{16+h}, v7 offset:{h*128}")
    e("s_mul_i32 s26, s20, 1280")
    e("s_lshl_b32 s27, s21, 6")
    e("s_add_u32 s26, s26, s27")
    e("v_lshlrev_b32 v7, 1, v0")
    e("s_waitcnt lgkmcnt(0)")
    for step in (16, 8, 4, 2, 1):
        for h in range(step):
            e(f"v_add_f32 v{16+h}, v{16+h}, v{16+h+step}")
    e("v_cvt_pk_bf16_f32 v16, v16, v16")
    e("buffer_store_short v16, v7, s[8:11], s26 offen")
    e("L_k2_end:")
    e("s_endpgm")
    return L


def kd(name, vgpr, sgpr):
    acc = (vgpr + 3) // 4 * 4
    return f""".amdhsa_kernel {name}
  .amdhsa_next_free_vgpr {vgpr}
  .amdhsa_next_free_sgpr {sgpr}
  .amdhsa_accum_offset {acc}
  .amdhsa_group_segment_fixed_size 0
  .amdhsa_kernarg_size 64
  .amdhsa_user_sgpr_count 2
  .amdhsa_user_sgpr_kernarg_segment_ptr 1
  .amdhsa_system_sgpr_workgroup_id_x 1
.end_amdhsa_kernel
"""


def main():
    out = [HEADER.rstrip("\n")]
    out.append(f"; @launch kernel=standalone__sliding_block_cached__decode_kernel grid=(256,1,1) block=(384,1,1) lds={LDS1}")
    out.append("; @launch kernel=final_reduce_kernel grid=(40,1,1) block=(256,1,1) lds=4096")
    out.append('.amdgcn_target "amdgcn-amd-amdhsa--gfx950"')
    out.append(".text")
    out.append(".globl standalone__sliding_block_cached__decode_kernel")
    out.append(".globl final_reduce_kernel")
    out += k1()
    out += k2()
    out.append('.section .rodata,"a"')
    out.append(".p2align 6")
    out.append(kd("standalone__sliding_block_cached__decode_kernel", 256, 100))
    out.append(".p2align 6")
    out.append(kd("final_reduce_kernel", 72, 40))
    sys.stdout.write("\n".join(out))


main()
```

```python
import sys, math, struct
ARGS = sys.argv[1:]
INSTR = 'instr' in ARGS
def opt(name, default):
    for a in ARGS:
        if a.startswith(name + "="):
            return int(a.split("=")[1])
    return default
WIN = opt("win", 6)
SLEEP = opt('sleep', 8)
SLEEPO = opt('sleepo', 0)
NFAST = opt('nfast', 6)
NOA = 'noa' in ARGS
KCOAL = True
WOLATE = 'wolate' in ARGS
EARLY = opt('early', 0)
NT = '' if 'nont' in ARGS else ' nt'
NTK = '' if 'kdef' in ARGS else NT
CHK = [int(x) for x in next((a.split("=")[1] for a in ARGS if a.startswith("chk=")), "0,2,4,6,8,10,12,14").split(",")]

HEADER = """; Kernarg layout for this problem (64 bytes, ptrs only, base s[0:1]):
"""

QBF = 0
OBUF = 512
MLBUF = 2560
QFLAG = 2624
LDS1 = 4096

Y_SIZE = 256 * 5120
QX_OFF = Y_SIZE
BOFF = 256 * 2048
OX_OFF = QX_OFF + 2 * BOFF
WS_SIZE = OX_OFF + 2 * BOFF


def k1():
    L = []
    e = L.append

    def stamp(k):
        if INSTR:
            e(f"s_memtime s[{64+2*k}:{65+2*k}]")

    def dump_stamps(n):
        if not INSTR:
            return
        e("s_waitcnt lgkmcnt(0)")
        e("s_lshl_b32 s55, s2, 10")
        e("s_lshl_b32 s59, s46, 7")
        e("s_add_u32 s55, s55, s59")
        e("s_add_u32 s55, s55, 0x400000")
        e("v_mov_b32 v29, 0")
        e("s_mov_b32 exec_lo, 1")
        e("s_mov_b32 exec_hi, 0")
        for k in range(n):
            e(f"v_mov_b32 v28, s{64+2*k}")
            e(f"buffer_store_dword v28, v29, s[40:43], s55 offen offset:{4*k}")
        e(f"v_mov_b32 v28, s96")
        e(f"buffer_store_dword v28, v29, s[40:43], s55 offen offset:{4*31}")
        e("s_mov_b64 exec, -1")

    def masks():
        e("v_and_b32 v28, 1, v2")
        e("v_lshlrev_b32 v28, 4, v28")
        e("v_mov_b32 v29, 0xffff")
        e("v_lshlrev_b32 v28, v28, v29")
        e("v_bfe_u32 v29, v2, 1, 2")
        for r in range(4):
            e(f"v_cmp_eq_u32 vcc, {r}, v29")
            e("s_nop 1")
            e(f"v_cndmask_b32 v{20+r}, 0, v28, vcc")

    def srd(d, b, sz):
        e(f"s_mov_b32 s{d}, s{b}")
        e(f"s_mov_b32 s{d+1}, s{b+1}")
        e(f"s_mov_b32 s{d+2}, {sz}")
        e(f"s_mov_b32 s{d+3}, 0x00020000")

    def poll_nonce(lbl):
        e(f"{lbl}:")
        e("buffer_load_dword v28, v31, s[60:63], 0 offen sc1")
        e("s_waitcnt vmcnt(0)")
        e("v_readfirstlane_b32 s59, v28")
        e("s_nop 3")
        e("s_cmp_eq_u32 s59, 0")
        e(f"s_cbranch_scc1 {lbl}")

    def check_tags(tags, lbl):
        e(f"v_min3_u32 v28, v{tags[0]}, v{tags[1]}, v{tags[2]}")
        e(f"v_max3_u32 v29, v{tags[0]}, v{tags[1]}, v{tags[2]}")
        rest = tags[3:]
        while len(rest) >= 2:
            e(f"v_min3_u32 v28, v28, v{rest[0]}, v{rest[1]}")
            e(f"v_max3_u32 v29, v29, v{rest[0]}, v{rest[1]}")
            rest = rest[2:]
        if rest:
            e(f"v_min_u32 v28, v28, v{rest[0]}")
            e(f"v_max_u32 v29, v29, v{rest[0]}")
        e("v_xor_b32 v28, s59, v28")
        e("v_xor_b32 v29, s59, v29")
        e("v_or_b32 v28, v28, v29")
        e("v_cmp_ne_u32 vcc, 0, v28")
        e("s_nop 1")
        e("s_cmp_lg_u64 vcc, 0")
        e(f"s_cbranch_scc1 {lbl}")

    def exchange(lbl, sbase, sown, vbase, voff, tags, pub, sleep):
        if not NOA:
            pub(sown, "")
        e(f"{lbl}:")
        for p in range(8):
            e(f"buffer_load_dwordx4 v[{vbase+8*p}:{vbase+3+8*p}], v{voff}, s[40:43], s{80+p} offen offset:{(p%2)*2048} sc1")
            e(f"buffer_load_dwordx4 v[{vbase+4+8*p}:{vbase+7+8*p}], v{voff}, s[40:43], s{80+p} offen offset:{(p%2)*2048+16} sc1")
        e("s_waitcnt vmcnt(0)")
        check_tags(tags, f"{lbl}_retry")
        e("s_cmp_lg_u32 s91, 0")
        e(f"s_cbranch_scc1 {lbl}_done")
        pub("s92", " sc1")
        e(f"s_branch {lbl}_done")
        e(f"{lbl}_retry:")
        e("s_add_u32 s90, s90, 1")
        e(f"s_cmp_lt_u32 s90, {NFAST}")
        e(f"s_cbranch_scc1 {lbl}_sl")
        e("s_cmp_lg_u32 s91, 0")
        e(f"s_cbranch_scc1 {lbl}_pubd")
        pub("s92", " sc1")
        e("s_mov_b32 s91, 1")
        e(f"{lbl}_pubd:")
        e("v_and_b32 v27, 7, v1")
        e("v_lshlrev_b32 v27, 11, v27")
        e("v_lshrrev_b32 v26, 3, v1")
        e("v_lshlrev_b32 v26, 19, v26")
        e("v_add_u32 v27, v27, v26")
        e("s_mov_b32 exec_lo, 0xffff")
        e("s_mov_b32 exec_hi, 0")
        e(f"buffer_load_dword v28, v27, s[40:43], {sbase} offen offset:2044 sc1")
        e("s_waitcnt vmcnt(0)")
        e("v_cmp_eq_u32 vcc, s59, v28")
        e("s_nop 1")
        e("s_mov_b32 s88, vcc_lo")
        e("s_mov_b64 exec, -1")
        for p in range(8):
            e(f"s_bitcmp1_b32 s88, {8+p}")
            e(f"s_cselect_b32 s{80+p}, {BOFF}, 0")
            e(f"s_add_u32 s{80+p}, s{80+p}, {sbase}")
            if p >= 2:
                e(f"s_add_u32 s{80+p}, s{80+p}, {(p//2)*4096}")
        e(f"{lbl}_sl:")
        if sleep:
            e(f"s_sleep {sleep}")
        e(f"s_branch {lbl}")
        e(f"{lbl}_done:")

    def exchange_setup(sbase, sown):
        e("s_mov_b32 s90, 0")
        e("s_mov_b32 s91, 0")
        e(f"s_add_u32 s92, {sown}, {BOFF}")
        for p in range(8):
            e(f"s_add_u32 s{80+p}, {sbase}, {(p//2)*4096}")

    N = "standalone__sliding_block_cached__decode_kernel"
    e(".p2align 8")
    e(f".type {N},@function")
    e(f"{N}:")
    e("s_cmp_ge_u32 s2, 256")
    e("s_cbranch_scc1 L_k1_end")
    e("s_load_dwordx16 s[4:19], s[0:1], 0")
    e("s_memrealtime s[96:97]")
    stamp(0)
    e("v_lshrrev_b32 v9, 6, v0")
    e("v_and_b32 v1, 63, v0")
    e("v_readfirstlane_b32 s46, v9")
    e("v_and_b32 v2, 15, v1")
    e("v_lshrrev_b32 v3, 4, v1")
    e("s_and_b32 s44, s2, 7")
    e("s_lshl_b32 s44, s44, 2")
    e("s_bfe_u32 s55, s2, 0x20003")
    e("s_or_b32 s44, s44, s55")
    e("s_lshr_b32 s45, s2, 5")
    e("v_mov_b32 v31, 0")
    e("s_cmp_eq_u32 s46, 0")
    e("s_cbranch_scc1 L_k1_hq")
    e("s_cmp_eq_u32 s46, 1")
    e("s_cbranch_scc1 L_k1_ho")
    e("s_sub_u32 s48, s46, 2")
    e("v_lshlrev_b32 v6, 8, v2")
    e("v_lshl_add_u32 v6, v3, 4, v6")
    e("v_lshlrev_b32 v7, 10, v3")
    e("v_lshl_add_u32 v7, v2, 4, v7")
    e("s_lshr_b32 s47, s48, 1")
    e("s_lshl_b32 s49, s47, 5")
    e("s_add_u32 s49, s49, s44")
    e("s_lshl_b32 s49, s49, 20")
    e("s_add_u32 s49, s49, 786432")
    e("s_lshl_b32 s55, s45, 15")
    e("s_add_u32 s49, s49, s55")
    e("s_and_b32 s55, s48, 1")
    e("s_lshl_b32 s55, s55, 14")
    e("s_add_u32 s49, s49, s55")
    e("s_add_u32 s50, s49, 4096")
    e("s_add_u32 s51, s49, 8192")
    e("s_add_u32 s52, s49, 12288")
    C = (128 ** -0.5) * math.log2(math.e)
    Cbits = struct.unpack("<I", struct.pack("<f", C))[0]
    e(f"s_mov_b32 s58, 0x{Cbits:08x}")
    e("s_mov_b32 s79, 0")
    e("s_lshl_b32 s55, s47, 8")
    e("v_lshl_add_u32 v8, v2, 4, s55")
    e(f"v_mov_b32 v9, {QFLAG}")
    e("s_lshl_b32 s55, s48, 9")
    e("v_lshlrev_b32 v10, 5, v2")
    e("v_lshl_add_u32 v10, v3, 4, v10")
    e("v_add_u32 v10, s55, v10")
    e("s_lshl_b32 s55, s48, 3")
    e("v_mov_b32 v11, s55")
    masks()
    e("s_waitcnt lgkmcnt(0)")
    srd(24, 6, 67108864)
    srd(28, 8, 67108864)
    if INSTR:
        srd(40, 18, 0x10000000)
    stamp(1)
    if not EARLY: e("s_barrier")
    cnt = [0]
    def pace():
        if WIN and cnt[0] >= WIN:
            e(f"s_waitcnt vmcnt({WIN-1})")
        cnt[0] += 1

    def qksm(nv_issued, tag):
        e(f"ds_read_b128 v[44:47], v8 offset:{QBF}")
        e(f"s_waitcnt vmcnt({nv_issued}) lgkmcnt(0)")
        for r in range(4):
            for n in range(16):
                c = "0" if r == 0 else f"v{192+n}"
                e(f"v_dot2_f32_bf16 v{192+n}, v{64+4*n+r}, v{44+r}, {c}")
        for step in (8, 4, 2, 1):
            for n in range(16):
                e(f"v_add_f32_dpp v{192+n}, v{192+n}, v{192+n} row_ror:{step} row_mask:0xf bank_mask:0xf")
        e("s_nop 1")
        e("v_max3_f32 v28, v192, v193, v194")
        for k in range(195, 207, 2):
            e(f"v_max3_f32 v28, v28, v{k}, v{k+1}")
        e("v_max_f32 v28, v28, v207")
        e("s_nop 0")
        for k in range(4):
            e(f"v_readlane_b32 s{60+k}, v28, {16*k}")
        e("s_nop 1")
        e("v_mov_b32 v30, s60")
        for k in range(1, 4):
            e(f"v_max_f32 v30, s{60+k}, v30")
        e("v_mul_f32 v30, s58, v30")
        for j in range(16):
            e(f"v_fma_f32 v{192+j}, v{192+j}, s58, -v30")
        for j in range(16):
            e(f"v_exp_f32 v{192+j}, v{192+j}")
        e("s_nop 0")
        for j in range(8):
            e(f"v_add_f32 v{208+j}, v{192+2*j}, v{193+2*j}")
        for j in range(4):
            e(f"v_add_f32 v{208+j}, v{208+j}, v{212+j}")
        e("v_add_f32 v208, v208, v210")
        e("v_add_f32 v209, v209, v211")
        e("v_add_f32 v28, v208, v209")
        e("s_nop 0")
        for k in range(4):
            e(f"v_readlane_b32 s{60+k}, v28, {16*k}")
        for n in range(16):
            e(f"v_cvt_pk_bf16_f32 v29, v{192+n}, v{192+n}")
            for r in range(4):
                e(f"v_and_b32 v{64+4*n+r}, v29, v{20+r}")
        e("v_mov_b32 v31, s60")
        for k in range(1, 4):
            e(f"v_add_f32 v31, s{60+k}, v31")
        e("s_mov_b32 s79, 1")

    for T in range(4):
        for t in range(4):
            n = T * 4 + t
            pace()
            if KCOAL: e(f"buffer_load_dwordx4 v[{64+4*n}:{67+4*n}], v7, s[24:27], s{49+T} offen offset:{t*256}{NT}")
            else: e(f"buffer_load_dwordx4 v[{64+4*n}:{67+4*n}], v6, s[24:27], s{49+T} offen offset:{t*64}{NTK}")
            if EARLY and n == EARLY - 1: e("s_barrier")
    def vload(n):
        T, i = n // 4, n % 4
        e(f"buffer_load_dwordx4 v[{128+4*n}:{131+4*n}], v7, s[28:31], s{49+T} offen offset:{i*256}{NT}")
    for n in range(16):
        if n in CHK:
            e("ds_read_b32 v28, v9")
            e("s_waitcnt lgkmcnt(0)")
            e("v_readfirstlane_b32 s59, v28")
            e("s_nop 3")
            e("s_cmp_lg_u32 s59, 0")
            e(f"s_cbranch_scc1 L_k1_rest{n}")
        pace()
        vload(n)
    stamp(2)
    e("L_k1_qspin:")
    e("ds_read_b32 v28, v9")
    e("s_waitcnt lgkmcnt(0)")
    e("v_readfirstlane_b32 s59, v28")
    e("s_nop 3")
    e("s_cmp_eq_u32 s59, 0")
    e("s_cbranch_scc1 L_k1_qspin")
    e("s_branch L_k1_qk")
    for n in range(min(CHK), 16):
        if n in CHK:
            e(f"L_k1_rest{n}:")
        vload(n)
    stamp(2)
    e("L_k1_qk:")
    qksm(16, 99)
    e("L_k1_pv:")
    stamp(3)
    e("s_nop 1")
    for n in range(16):
        e(f"s_waitcnt vmcnt({15 - n})")
        c = "0" if n == 0 else "v[40:43]"
        e(f"v_mfma_f32_16x16x32_bf16 v[40:43], v[{64+4*n}:{67+4*n}], v[{128+4*n}:{131+4*n}], {c}")
    stamp(4)
    e("s_mov_b32 exec_lo, -1")
    e("s_mov_b32 exec_hi, 0")
    e(f"ds_write_b64 v11, v[30:31] offset:{MLBUF}")
    e("s_nop 5")
    e(f"ds_write_b128 v10, v[40:43] offset:{OBUF}")
    e("s_mov_b64 exec, -1")
    e("s_waitcnt lgkmcnt(0)")
    e("s_barrier")
    stamp(5)
    dump_stamps(6)
    e("s_endpgm")

    e("L_k1_hq:")
    e("v_mul_u32_u24 v4, 0x28000, v3")
    e("v_lshl_add_u32 v4, v2, 4, v4")
    e("v_lshrrev_b32 v9, 3, v2")
    e("v_mul_u32_u24 v5, 1280, v9")
    e("v_mul_u32_u24 v29, 40, v3")
    e("v_add_u32 v5, v5, v29")
    e("s_mul_i32 s48, s45, 655360")
    e("s_lshl_b32 s55, s44, 8")
    e("s_add_u32 s48, s48, s55")
    e("s_mul_i32 s51, s45, 160")
    e("s_mov_b32 s56, 0x01000100")
    e("s_mov_b32 s57, 0x03020302")
    e(f"v_mov_b32 v35, {QFLAG}")
    e("s_waitcnt lgkmcnt(0)")
    srd(20, 4, 2560)
    srd(32, 10, 5242880)
    stamp(1)
    for i in range(5):
        e(f"buffer_load_dwordx2 v[{10+2*i}:{11+2*i}], v5, s[20:23], s51 offen offset:{8*i}")
    for i in range(20):
        e(f"buffer_load_dwordx4 v[{64+4*i}:{67+4*i}], v4, s[32:35], s48 offen{NT}")
        if i < 19:
            e("s_add_u32 s48, s48, 8192")
    e("ds_write_b32 v35, v31")
    srd(60, 16, 256)
    e("buffer_load_dword v32, v31, s[60:63], 0 offen sc1")
    e("s_waitcnt lgkmcnt(0)")
    e("s_barrier")
    srd(40, 18, 0x10000000 if INSTR else WS_SIZE)
    masks()
    e("s_lshl_b32 s52, s44, 14")
    e(f"s_add_u32 s52, s52, {QX_OFF}")
    e("s_lshl_b32 s55, s45, 11")
    e("s_add_u32 s55, s55, s52")
    exchange_setup("s52", "s55")
    e("v_lshlrev_b32 v30, 5, v1")
    e("v_lshrrev_b32 v36, 1, v3")
    e("v_lshlrev_b32 v36, 8, v36")
    e("v_lshl_add_u32 v36, v2, 4, v36")
    e("v_and_b32 v34, 1, v3")
    e("v_lshl_add_u32 v36, v34, 3, v36")
    e("s_waitcnt vmcnt(21)")
    for i in range(20):
        X = 10 + i // 2
        e(f"v_perm_b32 v28, v{X}, v{X}, s{56 + (i & 1)}")
        for r in range(4):
            e(f"v_and_b32 v{24+r}, v28, v{20+r}")
        e(f"s_waitcnt vmcnt({20 - i})")
        e("s_nop 0")
        c = "0" if i == 0 else "v[40:43]"
        e(f"v_mfma_f32_16x16x32_bf16 v[40:43], v[24:27], v[{64+4*i}:{67+4*i}], {c}")
    stamp(2)
    e("s_waitcnt vmcnt(0)")
    e("v_readfirstlane_b32 s59, v32")
    e("s_nop 3")
    e("s_cmp_lg_u32 s59, 0")
    e("s_cbranch_scc1 L_k1_have_nonce")
    poll_nonce("L_k1_npoll_q")
    e("L_k1_have_nonce:")
    stamp(3)
    e("s_nop 1")
    for i in range(4):
        e(f"v_mov_b32 v{208+2*i}, v{40+i}")
        e(f"v_mov_b32 v{209+2*i}, s59")
    def pubq(soff, fl):
        e(f"buffer_store_dwordx4 v[208:211], v30, s[40:43], {soff} offen{fl}")
        e(f"buffer_store_dwordx4 v[212:215], v30, s[40:43], {soff} offen offset:16{fl}")
    exchange("L_k1_xq", "s52", "s55", 64, 30, [64 + 4 * q + k for q in range(16) for k in (1, 3)], pubq, SLEEP)
    stamp(4)
    for i, off in enumerate((0, 2, 4, 6)):
        e(f"v_add_f32 v{224+i}, v{64+off}, v{72+off}")
        e(f"v_add_f32 v{228+i}, v{80+off}, v{88+off}")
        e(f"v_add_f32 v{216+i}, v{96+off}, v{104+off}")
        e(f"v_add_f32 v{220+i}, v{112+off}, v{120+off}")
    for i in range(4):
        e(f"v_add_f32 v{224+i}, v{224+i}, v{228+i}")
        e(f"v_add_f32 v{216+i}, v{216+i}, v{220+i}")
    for i in range(4):
        e(f"v_add_f32 v{224+i}, v{224+i}, v{216+i}")
    e("v_cvt_pk_bf16_f32 v32, v224, v225")
    e("v_cvt_pk_bf16_f32 v33, v226, v227")
    e("v_mov_b32 v34, 1")
    e(f"ds_write_b64 v36, v[32:33] offset:{QBF}")
    e("s_waitcnt lgkmcnt(0)")
    e("ds_write_b32 v35, v34")
    e("s_waitcnt lgkmcnt(0)")
    stamp(5)
    dump_stamps(6)
    e("s_endpgm")

    e("L_k1_ho:")
    e("v_mul_u32_u24 v8, 5120, v3")
    e("v_lshl_add_u32 v8, v2, 4, v8")
    e("s_lshl_b32 s53, s44, 7")
    e("s_lshl_b32 s55, s45, 4")
    e("s_add_u32 s53, s53, s55")
    e("s_mul_i32 s53, s53, 1280")
    e("s_add_u32 s54, s53, 2560")
    e("s_waitcnt lgkmcnt(0)")
    srd(60, 16, 256)
    e("s_cmp_lg_u32 s2, 0")
    e("s_cbranch_scc1 L_k1_nonice")
    e("s_or_b32 s96, s96, 1")
    e("v_mov_b32 v30, s96")
    e("s_mov_b32 exec_lo, 1")
    e("s_mov_b32 exec_hi, 0")
    e("buffer_store_dword v30, v31, s[60:63], 0 offen sc1")
    e("s_mov_b64 exec, -1")
    e("L_k1_nonice:")
    srd(36, 12, 5242880)
    srd(40, 18, 0x10000000 if INSTR else WS_SIZE)
    stamp(1)
    e("s_barrier")
    def woloads():
      for j in range(4):
        for cb in range(5):
            n = j * 5 + cb
            e(f"buffer_load_dwordx4 v[{64+4*n}:{67+4*n}], v8, s[36:39], s{53 + j//2} offen offset:{(j%2)*1280 + cb*256}{NT}")
    if not WOLATE: woloads()
    masks()
    e("s_lshl_b32 s52, s44, 14")
    e(f"s_add_u32 s52, s52, {OX_OFF}")
    e("s_lshl_b32 s55, s45, 11")
    e("s_add_u32 s56, s55, s52")
    exchange_setup("s52", "s56")
    e("v_lshlrev_b32 v30, 5, v1")
    e("v_lshrrev_b32 v9, 3, v2")
    e("v_lshlrev_b32 v10, 10, v9")
    e("v_lshl_add_u32 v10, v3, 5, v10")
    e("s_lshl_b32 s55, s45, 7")
    e("v_add_u32 v10, s55, v10")
    e("v_lshrrev_b32 v11, 5, v1")
    e("v_and_b32 v12, 31, v1")
    e("v_lshlrev_b32 v13, 10, v11")
    e("v_lshl_add_u32 v13, v12, 4, v13")
    e("v_lshlrev_b32 v14, 4, v11")
    e("s_lshl_b32 s57, s44, 3")
    e("s_add_u32 s57, s57, s45")
    e("s_mul_i32 s57, s57, 5120")
    e("v_lshrrev_b32 v15, 1, v3")
    e("v_mul_u32_u24 v15, 2560, v15")
    e("v_lshl_add_u32 v15, v2, 5, v15")
    e("v_and_b32 v16, 1, v3")
    e("v_lshl_add_u32 v15, v16, 4, v15")
    poll_nonce("L_k1_npoll_o")
    if WOLATE: woloads()
    e("s_nop 1")
    e("v_mov_b32 v231, s59")
    e("v_mov_b32 v223, s59")
    stamp(2)
    e("s_barrier")
    stamp(3)
    e(f"ds_read_b128 v[208:211], v14 offset:{MLBUF}")
    e(f"ds_read_b128 v[212:215], v13 offset:{OBUF}")
    e(f"ds_read_b128 v[216:219], v13 offset:{OBUF+512}")
    e("s_waitcnt lgkmcnt(2)" if not INSTR else "s_waitcnt lgkmcnt(0)")
    e("v_max_f32 v221, v208, v210")
    e("v_sub_f32 v224, v208, v221")
    e("v_sub_f32 v225, v210, v221")
    e("v_exp_f32 v224, v224")
    e("v_exp_f32 v225, v225")
    e("s_waitcnt lgkmcnt(0)")
    e("v_mul_f32 v222, v224, v209")
    e("v_mul_f32 v228, v224, v212")
    e("v_mul_f32 v229, v224, v213")
    e("v_mul_f32 v230, v224, v214")
    e("v_mul_f32 v220, v224, v215")
    e("v_fmac_f32 v222, v225, v211")
    e("v_fmac_f32 v228, v225, v216")
    e("v_fmac_f32 v229, v225, v217")
    e("v_fmac_f32 v230, v225, v218")
    e("v_fmac_f32 v220, v225, v219")
    stamp(4)
    def pubo(soff, fl):
        e(f"buffer_store_dwordx4 v[228:231], v30, s[40:43], {soff} offen{fl}")
        e(f"buffer_store_dwordx4 v[220:223], v30, s[40:43], {soff} offen offset:16{fl}")
    exchange("L_k1_xo", "s52", "s56", 144, 10, [144 + 4 * q + 3 for q in range(16)], pubo, SLEEPO)
    stamp(5)
    Ms = [149 + 8 * p for p in range(8)]
    e(f"v_max3_f32 v28, v{Ms[0]}, v{Ms[1]}, v{Ms[2]}")
    e(f"v_max3_f32 v28, v28, v{Ms[3]}, v{Ms[4]}")
    e(f"v_max3_f32 v28, v28, v{Ms[5]}, v{Ms[6]}")
    e(f"v_max_f32 v28, v28, v{Ms[7]}")
    for p in range(8):
        e(f"v_sub_f32 v{208+p}, v{Ms[p]}, v28")
    for p in range(8):
        e(f"v_exp_f32 v{208+p}, v{208+p}")
    e("s_nop 0")
    e(f"v_mul_f32 v29, v208, v150")
    for p in range(1, 8):
        e(f"v_fmac_f32 v29, v{208+p}, v{150+8*p}")
    e("v_rcp_f32 v29, v29")
    offs = (0, 1, 2, 4)
    for j in range(4):
        e(f"v_mul_f32 v{216+j}, v208, v{144+offs[j]}")
    for p in range(1, 8):
        for j in range(4):
            e(f"v_fmac_f32 v{216+j}, v{208+p}, v{144+8*p+offs[j]}")
    for j in range(4):
        e(f"v_mul_f32 v{216+j}, v{216+j}, v29")
    for j in range(4):
        e(f"v_cvt_pk_bf16_f32 v28, v{216+j}, v{216+j}")
        for r in range(4):
            e(f"v_and_b32 v{240+4*j+r}, v28, v{20+r}")
    e("s_nop 1")
    for j in range(4):
        for cb in range(5):
            n = j * 5 + cb
            acc = f"v[{32+4*cb}:{35+4*cb}]"
            c = "0" if j == 0 else acc
            e(f"v_mfma_f32_16x16x32_bf16 {acc}, v[{240+4*j}:{243+4*j}], v[{64+4*n}:{67+4*n}], {c}")
    e("s_nop 3")
    for cb in range(5):
        e(f"buffer_store_dwordx4 v[{32+4*cb}:{35+4*cb}], v15, s[40:43], s57 offen offset:{cb*512}")
    stamp(6)
    dump_stamps(7)
    e("L_k1_end:")
    e("s_endpgm")
    return L


def k2():
    L = []
    e = L.append
    N = "final_reduce_kernel"
    e(".p2align 8")
    e(f".type {N},@function")
    e(f"{N}:")
    e("s_cmp_ge_u32 s2, 40")
    e("s_cbranch_scc1 L_k2_end")
    e("s_load_dwordx2 s[4:5], s[0:1], 40")
    e("s_load_dwordx2 s[6:7], s[0:1], 56")
    e("s_cmp_ge_u32 s2, 20")
    e("s_cselect_b32 s20, 1, 0")
    e("s_mul_i32 s21, s20, 20")
    e("s_sub_u32 s21, s2, s21")
    e("v_and_b32 v1, 7, v0")
    e("v_lshrrev_b32 v2, 3, v0")
    e("v_mul_u32_u24 v3, 40960, v2")
    e("v_lshl_add_u32 v3, v1, 4, v3")
    e("s_mul_i32 s22, s20, 2560")
    e("s_lshl_b32 s23, s21, 7")
    e("s_add_u32 s22, s22, s23")
    e("s_waitcnt lgkmcnt(0)")
    for d, b, sz in [(8, 4, 2560), (12, 6, Y_SIZE)]:
        e(f"s_mov_b32 s{d}, s{b}")
        e(f"s_mov_b32 s{d+1}, s{b+1}")
        e(f"s_mov_b32 s{d+2}, {sz}")
        e(f"s_mov_b32 s{d+3}, 0x00020000")
    for s in range(8):
        e(f"buffer_load_dwordx4 v[{32+4*s}:{35+4*s}], v3, s[12:15], s22 offen")
        if s < 7:
            e("s_add_u32 s22, s22, 5120")
    e("v_lshlrev_b32 v7, 4, v0")
    e("s_waitcnt vmcnt(0)")
    for step in (4, 2, 1):
        for s in range(step):
            for i in range(4):
                e(f"v_add_f32 v{32+4*s+i}, v{32+4*s+i}, v{32+4*(s+step)+i}")
    e("ds_write_b128 v7, v[32:35]")
    e("s_waitcnt lgkmcnt(0)")
    e("s_barrier")
    e("v_cmp_gt_u32 vcc, 32, v0")
    e("s_and_saveexec_b64 s[24:25], vcc")
    e("s_cbranch_execz L_k2_end")
    e("v_lshlrev_b32 v7, 2, v0")
    for h in range(32):
        e(f"ds_read_b32 v{16+h}, v7 offset:{h*128}")
    e("s_mul_i32 s26, s20, 1280")
    e("s_lshl_b32 s27, s21, 6")
    e("s_add_u32 s26, s26, s27")
    e("v_lshlrev_b32 v7, 1, v0")
    e("s_waitcnt lgkmcnt(0)")
    for step in (16, 8, 4, 2, 1):
        for h in range(step):
            e(f"v_add_f32 v{16+h}, v{16+h}, v{16+h+step}")
    e("v_cvt_pk_bf16_f32 v16, v16, v16")
    e("buffer_store_short v16, v7, s[8:11], s26 offen")
    e("L_k2_end:")
    e("s_endpgm")
    return L


def kd(name, vgpr, sgpr):
    acc = (vgpr + 3) // 4 * 4
    return f""".amdhsa_kernel {name}
  .amdhsa_next_free_vgpr {vgpr}
  .amdhsa_next_free_sgpr {sgpr}
  .amdhsa_accum_offset {acc}
  .amdhsa_group_segment_fixed_size 0
  .amdhsa_kernarg_size 64
  .amdhsa_user_sgpr_count 2
  .amdhsa_user_sgpr_kernarg_segment_ptr 1
  .amdhsa_system_sgpr_workgroup_id_x 1
.end_amdhsa_kernel
"""


def main():
    out = [HEADER.rstrip("\n")]
    out.append(f"; @launch kernel=standalone__sliding_block_cached__decode_kernel grid=(256,1,1) block=(384,1,1) lds={LDS1}")
    out.append("; @launch kernel=final_reduce_kernel grid=(40,1,1) block=(256,1,1) lds=4096")
    out.append('.amdgcn_target "amdgcn-amd-amdhsa--gfx950"')
    out.append(".text")
    out.append(".globl standalone__sliding_block_cached__decode_kernel")
    out.append(".globl final_reduce_kernel")
    out += k1()
    out += k2()
    out.append('.section .rodata,"a"')
    out.append(".p2align 6")
    out.append(kd("standalone__sliding_block_cached__decode_kernel", 256, 100))
    out.append(".p2align 6")
    out.append(kd("final_reduce_kernel", 72, 40))
    sys.stdout.write("\n".join(out))


main()
```

```python
import sys, math, struct
ARGS = sys.argv[1:]
INSTR = 'instr' in ARGS
def opt(name, default):
    for a in ARGS:
        if a.startswith(name + "="):
            return int(a.split("=")[1])
    return default
WIN = opt("win", 6)
SLEEP = opt('sleep', 8)
SLEEPO = opt('sleepo', 0)
NFAST = opt('nfast', 8)
NFASTO = opt('nfasto', 24)
NOA = 'noa' in ARGS
KCOAL = True
WOLATE = 'wolate' in ARGS
EARLY = opt('early', 0)
NT = '' if 'nont' in ARGS else ' nt'
NTK = '' if 'kdef' in ARGS else NT
CHK = [int(x) for x in next((a.split("=")[1] for a in ARGS if a.startswith("chk=")), "0,2,4,6,8,10,12,14").split(",")]

HEADER = """; Kernarg layout for this problem (64 bytes, ptrs only, base s[0:1]):
"""

QBF = 0
OBUF = 512
MLBUF = 2560
QFLAG = 2624
LDS1 = 4096

Y_SIZE = 256 * 5120
QX_OFF = Y_SIZE
BOFF = 256 * 2048
OX_OFF = QX_OFF + 2 * BOFF
WS_SIZE = OX_OFF + 2 * BOFF


def k1():
    L = []
    e = L.append

    def stamp(k):
        if INSTR:
            e(f"s_memtime s[{64+2*k}:{65+2*k}]")

    def dump_stamps(n):
        if not INSTR:
            return
        e("s_waitcnt lgkmcnt(0)")
        e("s_lshl_b32 s55, s2, 10")
        e("s_lshl_b32 s59, s46, 7")
        e("s_add_u32 s55, s55, s59")
        e("s_add_u32 s55, s55, 0x400000")
        e("v_mov_b32 v29, 0")
        e("s_mov_b32 exec_lo, 1")
        e("s_mov_b32 exec_hi, 0")
        for k in range(n):
            e(f"v_mov_b32 v28, s{64+2*k}")
            e(f"buffer_store_dword v28, v29, s[40:43], s55 offen offset:{4*k}")
        e(f"v_mov_b32 v28, s96")
        e(f"buffer_store_dword v28, v29, s[40:43], s55 offen offset:{4*31}")
        e("s_mov_b64 exec, -1")

    def masks():
        e("v_and_b32 v28, 1, v2")
        e("v_lshlrev_b32 v28, 4, v28")
        e("v_mov_b32 v29, 0xffff")
        e("v_lshlrev_b32 v28, v28, v29")
        e("v_bfe_u32 v29, v2, 1, 2")
        for r in range(4):
            e(f"v_cmp_eq_u32 vcc, {r}, v29")
            e("s_nop 1")
            e(f"v_cndmask_b32 v{20+r}, 0, v28, vcc")

    def srd(d, b, sz):
        e(f"s_mov_b32 s{d}, s{b}")
        e(f"s_mov_b32 s{d+1}, s{b+1}")
        e(f"s_mov_b32 s{d+2}, {sz}")
        e(f"s_mov_b32 s{d+3}, 0x00020000")

    def poll_nonce(lbl):
        e(f"{lbl}:")
        e("buffer_load_dword v28, v31, s[60:63], 0 offen sc1")
        e("s_waitcnt vmcnt(0)")
        e("v_readfirstlane_b32 s59, v28")
        e("s_nop 3")
        e("s_cmp_eq_u32 s59, 0")
        e(f"s_cbranch_scc1 {lbl}")

    def check_tags(tags, lbl):
        e(f"v_min3_u32 v28, v{tags[0]}, v{tags[1]}, v{tags[2]}")
        e(f"v_max3_u32 v29, v{tags[0]}, v{tags[1]}, v{tags[2]}")
        rest = tags[3:]
        while len(rest) >= 2:
            e(f"v_min3_u32 v28, v28, v{rest[0]}, v{rest[1]}")
            e(f"v_max3_u32 v29, v29, v{rest[0]}, v{rest[1]}")
            rest = rest[2:]
        if rest:
            e(f"v_min_u32 v28, v28, v{rest[0]}")
            e(f"v_max_u32 v29, v29, v{rest[0]}")
        e("v_xor_b32 v28, s59, v28")
        e("v_xor_b32 v29, s59, v29")
        e("v_or_b32 v28, v28, v29")
        e("v_cmp_ne_u32 vcc, 0, v28")
        e("s_nop 1")
        e("s_cmp_lg_u64 vcc, 0")
        e(f"s_cbranch_scc1 {lbl}")

    def exchange(lbl, sbase, sown, vbase, voff, tags, pub, sleep, nfast):
        if not NOA:
            pub(sown, "")
        e(f"{lbl}:")
        for p in range(8):
            e(f"buffer_load_dwordx4 v[{vbase+8*p}:{vbase+3+8*p}], v{voff}, s[40:43], s{80+p} offen offset:{(p%2)*2048} sc1")
            e(f"buffer_load_dwordx4 v[{vbase+4+8*p}:{vbase+7+8*p}], v{voff}, s[40:43], s{80+p} offen offset:{(p%2)*2048+16} sc1")
        e("s_waitcnt vmcnt(0)")
        check_tags(tags, f"{lbl}_retry")
        e("s_cmp_lg_u32 s91, 0")
        e(f"s_cbranch_scc1 {lbl}_done")
        pub("s92", " sc1")
        e(f"s_branch {lbl}_done")
        e(f"{lbl}_retry:")
        e("s_add_u32 s90, s90, 1")
        e(f"s_cmp_lt_u32 s90, {nfast}")
        e(f"s_cbranch_scc1 {lbl}_sl")
        e("s_cmp_lg_u32 s91, 0")
        e(f"s_cbranch_scc1 {lbl}_pubd")
        pub("s92", " sc1")
        e("s_mov_b32 s91, 1")
        e(f"{lbl}_pubd:")
        e("v_and_b32 v27, 7, v1")
        e("v_lshlrev_b32 v27, 11, v27")
        e("v_lshrrev_b32 v26, 3, v1")
        e("v_lshlrev_b32 v26, 19, v26")
        e("v_add_u32 v27, v27, v26")
        e("s_mov_b32 exec_lo, 0xffff")
        e("s_mov_b32 exec_hi, 0")
        e(f"buffer_load_dword v28, v27, s[40:43], {sbase} offen offset:2044 sc1")
        e("s_waitcnt vmcnt(0)")
        e("v_cmp_eq_u32 vcc, s59, v28")
        e("s_nop 1")
        e("s_mov_b32 s88, vcc_lo")
        e("s_mov_b64 exec, -1")
        for p in range(8):
            e(f"s_bitcmp1_b32 s88, {8+p}")
            e(f"s_cselect_b32 s{80+p}, {BOFF}, 0")
            e(f"s_add_u32 s{80+p}, s{80+p}, {sbase}")
            if p >= 2:
                e(f"s_add_u32 s{80+p}, s{80+p}, {(p//2)*4096}")
        e(f"{lbl}_sl:")
        if sleep:
            e(f"s_sleep {sleep}")
        e(f"s_branch {lbl}")
        e(f"{lbl}_done:")

    def exchange_setup(sbase, sown):
        e("s_mov_b32 s90, 0")
        e("s_mov_b32 s91, 0")
        e(f"s_add_u32 s92, {sown}, {BOFF}")
        for p in range(8):
            e(f"s_add_u32 s{80+p}, {sbase}, {(p//2)*4096}")

    N = "standalone__sliding_block_cached__decode_kernel"
    e(".p2align 8")
    e(f".type {N},@function")
    e(f"{N}:")
    e("s_cmp_ge_u32 s2, 256")
    e("s_cbranch_scc1 L_k1_end")
    e("s_load_dwordx16 s[4:19], s[0:1], 0")
    e("s_memrealtime s[96:97]")
    stamp(0)
    e("v_lshrrev_b32 v9, 6, v0")
    e("v_and_b32 v1, 63, v0")
    e("v_readfirstlane_b32 s46, v9")
    e("v_and_b32 v2, 15, v1")
    e("v_lshrrev_b32 v3, 4, v1")
    e("s_and_b32 s44, s2, 7")
    e("s_lshl_b32 s44, s44, 2")
    e("s_bfe_u32 s55, s2, 0x20003")
    e("s_or_b32 s44, s44, s55")
    e("s_lshr_b32 s45, s2, 5")
    e("v_mov_b32 v31, 0")
    e("s_cmp_eq_u32 s46, 0")
    e("s_cbranch_scc1 L_k1_hq")
    e("s_cmp_eq_u32 s46, 1")
    e("s_cbranch_scc1 L_k1_ho")
    e("s_sub_u32 s48, s46, 2")
    e("v_lshlrev_b32 v6, 8, v2")
    e("v_lshl_add_u32 v6, v3, 4, v6")
    e("v_lshlrev_b32 v7, 10, v3")
    e("v_lshl_add_u32 v7, v2, 4, v7")
    e("s_lshr_b32 s47, s48, 1")
    e("s_lshl_b32 s49, s47, 5")
    e("s_add_u32 s49, s49, s44")
    e("s_lshl_b32 s49, s49, 20")
    e("s_add_u32 s49, s49, 786432")
    e("s_lshl_b32 s55, s45, 15")
    e("s_add_u32 s49, s49, s55")
    e("s_and_b32 s55, s48, 1")
    e("s_lshl_b32 s55, s55, 14")
    e("s_add_u32 s49, s49, s55")
    e("s_add_u32 s50, s49, 4096")
    e("s_add_u32 s51, s49, 8192")
    e("s_add_u32 s52, s49, 12288")
    C = (128 ** -0.5) * math.log2(math.e)
    Cbits = struct.unpack("<I", struct.pack("<f", C))[0]
    e(f"s_mov_b32 s58, 0x{Cbits:08x}")
    e("s_mov_b32 s79, 0")
    e("s_lshl_b32 s55, s47, 8")
    e("v_lshl_add_u32 v8, v2, 4, s55")
    e(f"v_mov_b32 v9, {QFLAG}")
    e("s_lshl_b32 s55, s48, 9")
    e("v_lshlrev_b32 v10, 5, v2")
    e("v_lshl_add_u32 v10, v3, 4, v10")
    e("v_add_u32 v10, s55, v10")
    e("s_lshl_b32 s55, s48, 3")
    e("v_mov_b32 v11, s55")
    masks()
    e("s_waitcnt lgkmcnt(0)")
    srd(24, 6, 67108864)
    srd(28, 8, 67108864)
    if INSTR:
        srd(40, 18, 0x10000000)
    stamp(1)
    if not EARLY: e("s_barrier")
    cnt = [0]
    def pace():
        if WIN and cnt[0] >= WIN:
            e(f"s_waitcnt vmcnt({WIN-1})")
        cnt[0] += 1

    def qksm(nv_issued, tag):
        e(f"ds_read_b128 v[44:47], v8 offset:{QBF}")
        e(f"s_waitcnt vmcnt({nv_issued}) lgkmcnt(0)")
        for r in range(4):
            for n in range(16):
                c = "0" if r == 0 else f"v{192+n}"
                e(f"v_dot2_f32_bf16 v{192+n}, v{64+4*n+r}, v{44+r}, {c}")
        for step in (8, 4, 2, 1):
            for n in range(16):
                e(f"v_add_f32_dpp v{192+n}, v{192+n}, v{192+n} row_ror:{step} row_mask:0xf bank_mask:0xf")
        e("s_nop 1")
        e("v_max3_f32 v28, v192, v193, v194")
        for k in range(195, 207, 2):
            e(f"v_max3_f32 v28, v28, v{k}, v{k+1}")
        e("v_max_f32 v28, v28, v207")
        e("s_nop 0")
        for k in range(4):
            e(f"v_readlane_b32 s{60+k}, v28, {16*k}")
        e("s_nop 1")
        e("v_mov_b32 v30, s60")
        for k in range(1, 4):
            e(f"v_max_f32 v30, s{60+k}, v30")
        e("v_mul_f32 v30, s58, v30")
        for j in range(16):
            e(f"v_fma_f32 v{192+j}, v{192+j}, s58, -v30")
        for j in range(16):
            e(f"v_exp_f32 v{192+j}, v{192+j}")
        e("s_nop 0")
        for j in range(8):
            e(f"v_add_f32 v{208+j}, v{192+2*j}, v{193+2*j}")
        for j in range(4):
            e(f"v_add_f32 v{208+j}, v{208+j}, v{212+j}")
        e("v_add_f32 v208, v208, v210")
        e("v_add_f32 v209, v209, v211")
        e("v_add_f32 v28, v208, v209")
        e("s_nop 0")
        for k in range(4):
            e(f"v_readlane_b32 s{60+k}, v28, {16*k}")
        for n in range(16):
            e(f"v_cvt_pk_bf16_f32 v29, v{192+n}, v{192+n}")
            for r in range(4):
                e(f"v_and_b32 v{64+4*n+r}, v29, v{20+r}")
        e("v_mov_b32 v31, s60")
        for k in range(1, 4):
            e(f"v_add_f32 v31, s{60+k}, v31")
        e("s_mov_b32 s79, 1")

    for T in range(4):
        for t in range(4):
            n = T * 4 + t
            pace()
            if KCOAL: e(f"buffer_load_dwordx4 v[{64+4*n}:{67+4*n}], v7, s[24:27], s{49+T} offen offset:{t*256}{NT}")
            else: e(f"buffer_load_dwordx4 v[{64+4*n}:{67+4*n}], v6, s[24:27], s{49+T} offen offset:{t*64}{NTK}")
            if EARLY and n == EARLY - 1: e("s_barrier")
    def vload(n):
        T, i = n // 4, n % 4
        e(f"buffer_load_dwordx4 v[{128+4*n}:{131+4*n}], v7, s[28:31], s{49+T} offen offset:{i*256}{NT}")
    for n in range(16):
        if n in CHK:
            e("ds_read_b32 v28, v9")
            e("s_waitcnt lgkmcnt(0)")
            e("v_readfirstlane_b32 s59, v28")
            e("s_nop 3")
            e("s_cmp_lg_u32 s59, 0")
            e(f"s_cbranch_scc1 L_k1_rest{n}")
        pace()
        vload(n)
    stamp(2)
    e("L_k1_qspin:")
    e("ds_read_b32 v28, v9")
    e("s_waitcnt lgkmcnt(0)")
    e("v_readfirstlane_b32 s59, v28")
    e("s_nop 3")
    e("s_cmp_eq_u32 s59, 0")
    e("s_cbranch_scc1 L_k1_qspin")
    e("s_branch L_k1_qk")
    for n in range(min(CHK), 16):
        if n in CHK:
            e(f"L_k1_rest{n}:")
        vload(n)
    stamp(2)
    e("L_k1_qk:")
    qksm(16, 99)
    e("L_k1_pv:")
    stamp(3)
    e("s_nop 1")
    for n in range(16):
        e(f"s_waitcnt vmcnt({15 - n})")
        c = "0" if n == 0 else "v[40:43]"
        e(f"v_mfma_f32_16x16x32_bf16 v[40:43], v[{64+4*n}:{67+4*n}], v[{128+4*n}:{131+4*n}], {c}")
    stamp(4)
    e("s_mov_b32 exec_lo, -1")
    e("s_mov_b32 exec_hi, 0")
    e(f"ds_write_b64 v11, v[30:31] offset:{MLBUF}")
    e("s_nop 5")
    e(f"ds_write_b128 v10, v[40:43] offset:{OBUF}")
    e("s_mov_b64 exec, -1")
    e("s_waitcnt lgkmcnt(0)")
    e("s_barrier")
    stamp(5)
    dump_stamps(6)
    e("s_endpgm")

    e("L_k1_hq:")
    e("v_mul_u32_u24 v4, 0x28000, v3")
    e("v_lshl_add_u32 v4, v2, 4, v4")
    e("v_lshrrev_b32 v9, 3, v2")
    e("v_mul_u32_u24 v5, 1280, v9")
    e("v_mul_u32_u24 v29, 40, v3")
    e("v_add_u32 v5, v5, v29")
    e("s_mul_i32 s48, s45, 655360")
    e("s_lshl_b32 s55, s44, 8")
    e("s_add_u32 s48, s48, s55")
    e("s_mul_i32 s51, s45, 160")
    e("s_mov_b32 s56, 0x01000100")
    e("s_mov_b32 s57, 0x03020302")
    e(f"v_mov_b32 v35, {QFLAG}")
    e("s_waitcnt lgkmcnt(0)")
    srd(20, 4, 2560)
    srd(32, 10, 5242880)
    stamp(1)
    for i in range(5):
        e(f"buffer_load_dwordx2 v[{10+2*i}:{11+2*i}], v5, s[20:23], s51 offen offset:{8*i}")
    for i in range(20):
        e(f"buffer_load_dwordx4 v[{64+4*i}:{67+4*i}], v4, s[32:35], s48 offen{NT}")
        if i < 19:
            e("s_add_u32 s48, s48, 8192")
    e("ds_write_b32 v35, v31")
    srd(60, 16, 256)
    e("buffer_load_dword v32, v31, s[60:63], 0 offen sc1")
    e("s_waitcnt lgkmcnt(0)")
    e("s_barrier")
    srd(40, 18, 0x10000000 if INSTR else WS_SIZE)
    masks()
    e("s_lshl_b32 s52, s44, 14")
    e(f"s_add_u32 s52, s52, {QX_OFF}")
    e("s_lshl_b32 s55, s45, 11")
    e("s_add_u32 s55, s55, s52")
    exchange_setup("s52", "s55")
    e("v_lshlrev_b32 v30, 5, v1")
    e("v_lshrrev_b32 v36, 1, v3")
    e("v_lshlrev_b32 v36, 8, v36")
    e("v_lshl_add_u32 v36, v2, 4, v36")
    e("v_and_b32 v34, 1, v3")
    e("v_lshl_add_u32 v36, v34, 3, v36")
    e("s_waitcnt vmcnt(21)")
    for i in range(20):
        X = 10 + i // 2
        e(f"v_perm_b32 v28, v{X}, v{X}, s{56 + (i & 1)}")
        for r in range(4):
            e(f"v_and_b32 v{24+r}, v28, v{20+r}")
        e(f"s_waitcnt vmcnt({20 - i})")
        e("s_nop 0")
        c = "0" if i == 0 else "v[40:43]"
        e(f"v_mfma_f32_16x16x32_bf16 v[40:43], v[24:27], v[{64+4*i}:{67+4*i}], {c}")
    stamp(2)
    e("s_waitcnt vmcnt(0)")
    e("v_readfirstlane_b32 s59, v32")
    e("s_nop 3")
    e("s_cmp_lg_u32 s59, 0")
    e("s_cbranch_scc1 L_k1_have_nonce")
    poll_nonce("L_k1_npoll_q")
    e("L_k1_have_nonce:")
    stamp(3)
    e("s_nop 1")
    for i in range(4):
        e(f"v_mov_b32 v{208+2*i}, v{40+i}")
        e(f"v_mov_b32 v{209+2*i}, s59")
    def pubq(soff, fl):
        e(f"buffer_store_dwordx4 v[208:211], v30, s[40:43], {soff} offen{fl}")
        e(f"buffer_store_dwordx4 v[212:215], v30, s[40:43], {soff} offen offset:16{fl}")
    exchange("L_k1_xq", "s52", "s55", 64, 30, [64 + 4 * q + k for q in range(16) for k in (1, 3)], pubq, SLEEP, NFAST)
    stamp(4)
    for i, off in enumerate((0, 2, 4, 6)):
        e(f"v_add_f32 v{224+i}, v{64+off}, v{72+off}")
        e(f"v_add_f32 v{228+i}, v{80+off}, v{88+off}")
        e(f"v_add_f32 v{216+i}, v{96+off}, v{104+off}")
        e(f"v_add_f32 v{220+i}, v{112+off}, v{120+off}")
    for i in range(4):
        e(f"v_add_f32 v{224+i}, v{224+i}, v{228+i}")
        e(f"v_add_f32 v{216+i}, v{216+i}, v{220+i}")
    for i in range(4):
        e(f"v_add_f32 v{224+i}, v{224+i}, v{216+i}")
    e("v_cvt_pk_bf16_f32 v32, v224, v225")
    e("v_cvt_pk_bf16_f32 v33, v226, v227")
    e("v_mov_b32 v34, 1")
    e(f"ds_write_b64 v36, v[32:33] offset:{QBF}")
    e("s_waitcnt lgkmcnt(0)")
    e("ds_write_b32 v35, v34")
    e("s_waitcnt lgkmcnt(0)")
    stamp(5)
    dump_stamps(6)
    e("s_endpgm")

    e("L_k1_ho:")
    e("v_mul_u32_u24 v8, 5120, v3")
    e("v_lshl_add_u32 v8, v2, 4, v8")
    e("s_lshl_b32 s53, s44, 7")
    e("s_lshl_b32 s55, s45, 4")
    e("s_add_u32 s53, s53, s55")
    e("s_mul_i32 s53, s53, 1280")
    e("s_add_u32 s54, s53, 2560")
    e("s_waitcnt lgkmcnt(0)")
    srd(60, 16, 256)
    e("s_cmp_lg_u32 s2, 0")
    e("s_cbranch_scc1 L_k1_nonice")
    e("s_or_b32 s96, s96, 1")
    e("v_mov_b32 v30, s96")
    e("s_mov_b32 exec_lo, 1")
    e("s_mov_b32 exec_hi, 0")
    e("buffer_store_dword v30, v31, s[60:63], 0 offen sc1")
    e("s_mov_b64 exec, -1")
    e("L_k1_nonice:")
    srd(36, 12, 5242880)
    srd(40, 18, 0x10000000 if INSTR else WS_SIZE)
    stamp(1)
    e("s_barrier")
    def woloads():
      for j in range(4):
        for cb in range(5):
            n = j * 5 + cb
            e(f"buffer_load_dwordx4 v[{64+4*n}:{67+4*n}], v8, s[36:39], s{53 + j//2} offen offset:{(j%2)*1280 + cb*256}{NT}")
    if not WOLATE: woloads()
    masks()
    e("s_lshl_b32 s52, s44, 14")
    e(f"s_add_u32 s52, s52, {OX_OFF}")
    e("s_lshl_b32 s55, s45, 11")
    e("s_add_u32 s56, s55, s52")
    exchange_setup("s52", "s56")
    e("v_lshlrev_b32 v30, 5, v1")
    e("v_lshrrev_b32 v9, 3, v2")
    e("v_lshlrev_b32 v10, 10, v9")
    e("v_lshl_add_u32 v10, v3, 5, v10")
    e("s_lshl_b32 s55, s45, 7")
    e("v_add_u32 v10, s55, v10")
    e("v_lshrrev_b32 v11, 5, v1")
    e("v_and_b32 v12, 31, v1")
    e("v_lshlrev_b32 v13, 10, v11")
    e("v_lshl_add_u32 v13, v12, 4, v13")
    e("v_lshlrev_b32 v14, 4, v11")
    e("s_lshl_b32 s57, s44, 3")
    e("s_add_u32 s57, s57, s45")
    e("s_mul_i32 s57, s57, 5120")
    e("v_lshrrev_b32 v15, 1, v3")
    e("v_mul_u32_u24 v15, 2560, v15")
    e("v_lshl_add_u32 v15, v2, 5, v15")
    e("v_and_b32 v16, 1, v3")
    e("v_lshl_add_u32 v15, v16, 4, v15")
    poll_nonce("L_k1_npoll_o")
    if WOLATE: woloads()
    e("s_nop 1")
    e("v_mov_b32 v231, s59")
    e("v_mov_b32 v223, s59")
    stamp(2)
    e("s_barrier")
    stamp(3)
    e(f"ds_read_b128 v[208:211], v14 offset:{MLBUF}")
    e(f"ds_read_b128 v[212:215], v13 offset:{OBUF}")
    e(f"ds_read_b128 v[216:219], v13 offset:{OBUF+512}")
    e("s_waitcnt lgkmcnt(2)" if not INSTR else "s_waitcnt lgkmcnt(0)")
    e("v_max_f32 v221, v208, v210")
    e("v_sub_f32 v224, v208, v221")
    e("v_sub_f32 v225, v210, v221")
    e("v_exp_f32 v224, v224")
    e("v_exp_f32 v225, v225")
    e("s_waitcnt lgkmcnt(0)")
    e("v_mul_f32 v222, v224, v209")
    e("v_mul_f32 v228, v224, v212")
    e("v_mul_f32 v229, v224, v213")
    e("v_mul_f32 v230, v224, v214")
    e("v_mul_f32 v220, v224, v215")
    e("v_fmac_f32 v222, v225, v211")
    e("v_fmac_f32 v228, v225, v216")
    e("v_fmac_f32 v229, v225, v217")
    e("v_fmac_f32 v230, v225, v218")
    e("v_fmac_f32 v220, v225, v219")
    stamp(4)
    def pubo(soff, fl):
        e(f"buffer_store_dwordx4 v[228:231], v30, s[40:43], {soff} offen{fl}")
        e(f"buffer_store_dwordx4 v[220:223], v30, s[40:43], {soff} offen offset:16{fl}")
    exchange("L_k1_xo", "s52", "s56", 144, 10, [144 + 4 * q + 3 for q in range(16)], pubo, SLEEPO, NFASTO)
    stamp(5)
    Ms = [149 + 8 * p for p in range(8)]
    e(f"v_max3_f32 v28, v{Ms[0]}, v{Ms[1]}, v{Ms[2]}")
    e(f"v_max3_f32 v28, v28, v{Ms[3]}, v{Ms[4]}")
    e(f"v_max3_f32 v28, v28, v{Ms[5]}, v{Ms[6]}")
    e(f"v_max_f32 v28, v28, v{Ms[7]}")
    for p in range(8):
        e(f"v_sub_f32 v{208+p}, v{Ms[p]}, v28")
    for p in range(8):
        e(f"v_exp_f32 v{208+p}, v{208+p}")
    e("s_nop 0")
    e(f"v_mul_f32 v29, v208, v150")
    for p in range(1, 8):
        e(f"v_fmac_f32 v29, v{208+p}, v{150+8*p}")
    e("v_rcp_f32 v29, v29")
    offs = (0, 1, 2, 4)
    for j in range(4):
        e(f"v_mul_f32 v{216+j}, v208, v{144+offs[j]}")
    for p in range(1, 8):
        for j in range(4):
            e(f"v_fmac_f32 v{216+j}, v{208+p}, v{144+8*p+offs[j]}")
    for j in range(4):
        e(f"v_mul_f32 v{216+j}, v{216+j}, v29")
    for j in range(4):
        e(f"v_cvt_pk_bf16_f32 v28, v{216+j}, v{216+j}")
        for r in range(4):
            e(f"v_and_b32 v{240+4*j+r}, v28, v{20+r}")
    e("s_nop 1")
    for j in range(4):
        for cb in range(5):
            n = j * 5 + cb
            acc = f"v[{32+4*cb}:{35+4*cb}]"
            c = "0" if j == 0 else acc
            e(f"v_mfma_f32_16x16x32_bf16 {acc}, v[{240+4*j}:{243+4*j}], v[{64+4*n}:{67+4*n}], {c}")
    e("s_nop 3")
    for cb in range(5):
        e(f"buffer_store_dwordx4 v[{32+4*cb}:{35+4*cb}], v15, s[40:43], s57 offen offset:{cb*512}")
    stamp(6)
    dump_stamps(7)
    e("L_k1_end:")
    e("s_endpgm")
    return L


def k2():
    L = []
    e = L.append
    N = "final_reduce_kernel"
    e(".p2align 8")
    e(f".type {N},@function")
    e(f"{N}:")
    e("s_cmp_ge_u32 s2, 40")
    e("s_cbranch_scc1 L_k2_end")
    e("s_load_dwordx2 s[4:5], s[0:1], 40")
    e("s_load_dwordx2 s[6:7], s[0:1], 56")
    e("s_cmp_ge_u32 s2, 20")
    e("s_cselect_b32 s20, 1, 0")
    e("s_mul_i32 s21, s20, 20")
    e("s_sub_u32 s21, s2, s21")
    e("v_and_b32 v1, 7, v0")
    e("v_lshrrev_b32 v2, 3, v0")
    e("v_mul_u32_u24 v3, 40960, v2")
    e("v_lshl_add_u32 v3, v1, 4, v3")
    e("s_mul_i32 s22, s20, 2560")
    e("s_lshl_b32 s23, s21, 7")
    e("s_add_u32 s22, s22, s23")
    e("s_waitcnt lgkmcnt(0)")
    for d, b, sz in [(8, 4, 2560), (12, 6, Y_SIZE)]:
        e(f"s_mov_b32 s{d}, s{b}")
        e(f"s_mov_b32 s{d+1}, s{b+1}")
        e(f"s_mov_b32 s{d+2}, {sz}")
        e(f"s_mov_b32 s{d+3}, 0x00020000")
    for s in range(8):
        e(f"buffer_load_dwordx4 v[{32+4*s}:{35+4*s}], v3, s[12:15], s22 offen")
        if s < 7:
            e("s_add_u32 s22, s22, 5120")
    e("v_lshlrev_b32 v7, 4, v0")
    e("s_waitcnt vmcnt(0)")
    for step in (4, 2, 1):
        for s in range(step):
            for i in range(4):
                e(f"v_add_f32 v{32+4*s+i}, v{32+4*s+i}, v{32+4*(s+step)+i}")
    e("ds_write_b128 v7, v[32:35]")
    e("s_waitcnt lgkmcnt(0)")
    e("s_barrier")
    e("v_cmp_gt_u32 vcc, 32, v0")
    e("s_and_saveexec_b64 s[24:25], vcc")
    e("s_cbranch_execz L_k2_end")
    e("v_lshlrev_b32 v7, 2, v0")
    for h in range(32):
        e(f"ds_read_b32 v{16+h}, v7 offset:{h*128}")
    e("s_mul_i32 s26, s20, 1280")
    e("s_lshl_b32 s27, s21, 6")
    e("s_add_u32 s26, s26, s27")
    e("v_lshlrev_b32 v7, 1, v0")
    e("s_waitcnt lgkmcnt(0)")
    for step in (16, 8, 4, 2, 1):
        for h in range(step):
            e(f"v_add_f32 v{16+h}, v{16+h}, v{16+h+step}")
    e("v_cvt_pk_bf16_f32 v16, v16, v16")
    e("buffer_store_short v16, v7, s[8:11], s26 offen")
    e("L_k2_end:")
    e("s_endpgm")
    return L


def kd(name, vgpr, sgpr):
    acc = (vgpr + 3) // 4 * 4
    return f""".amdhsa_kernel {name}
  .amdhsa_next_free_vgpr {vgpr}
  .amdhsa_next_free_sgpr {sgpr}
  .amdhsa_accum_offset {acc}
  .amdhsa_group_segment_fixed_size 0
  .amdhsa_kernarg_size 64
  .amdhsa_user_sgpr_count 2
  .amdhsa_user_sgpr_kernarg_segment_ptr 1
  .amdhsa_system_sgpr_workgroup_id_x 1
.end_amdhsa_kernel
"""


def main():
    out = [HEADER.rstrip("\n")]
    out.append(f"; @launch kernel=standalone__sliding_block_cached__decode_kernel grid=(256,1,1) block=(384,1,1) lds={LDS1}")
    out.append("; @launch kernel=final_reduce_kernel grid=(40,1,1) block=(256,1,1) lds=4096")
    out.append('.amdgcn_target "amdgcn-amd-amdhsa--gfx950"')
    out.append(".text")
    out.append(".globl standalone__sliding_block_cached__decode_kernel")
    out.append(".globl final_reduce_kernel")
    out += k1()
    out += k2()
    out.append('.section .rodata,"a"')
    out.append(".p2align 6")
    out.append(kd("standalone__sliding_block_cached__decode_kernel", 256, 100))
    out.append(".p2align 6")
    out.append(kd("final_reduce_kernel", 72, 40))
    sys.stdout.write("\n".join(out))


main()
```

```python
import sys, math, struct
ARGS = sys.argv[1:]
INSTR = 'instr' in ARGS
def opt(name, default):
    for a in ARGS:
        if a.startswith(name + "="):
            return int(a.split("=")[1])
    return default
WIN = opt("win", 6)
SLEEP = opt('sleep', 8)
SLEEPO = opt('sleepo', 0)
NFAST = opt('nfast', 8)
NFASTO = opt('nfasto', 24)
NOA = 'noa' in ARGS
KCOAL = True
WOLATE = 'wolate' in ARGS
EARLY = opt('early', 0)
NT = '' if 'nont' in ARGS else ' nt'
NTK = '' if 'kdef' in ARGS else NT
CHK = [int(x) for x in next((a.split("=")[1] for a in ARGS if a.startswith("chk=")), "0,2,4,6,8,10,12,14").split(",")]

HEADER = """; Kernarg layout for this problem (64 bytes, ptrs only, base s[0:1]):
"""

QBF = 0
OBUF = 512
MLBUF = 2560
QFLAG = 2624
LDS1 = 4096

Y_SIZE = 256 * 5120
QX_OFF = Y_SIZE
BOFF = 256 * 2048
OX_OFF = QX_OFF + 2 * BOFF
WS_SIZE = OX_OFF + 2 * BOFF


def k1():
    L = []
    e = L.append

    def stamp(k):
        if INSTR:
            e(f"s_memtime s[{64+2*k}:{65+2*k}]")

    def dump_stamps(n):
        if not INSTR:
            return
        e("s_waitcnt lgkmcnt(0)")
        e("s_lshl_b32 s55, s2, 10")
        e("s_lshl_b32 s59, s46, 7")
        e("s_add_u32 s55, s55, s59")
        e("s_add_u32 s55, s55, 0x400000")
        e("v_mov_b32 v29, 0")
        e("s_mov_b32 exec_lo, 1")
        e("s_mov_b32 exec_hi, 0")
        for k in range(n):
            e(f"v_mov_b32 v28, s{64+2*k}")
            e(f"buffer_store_dword v28, v29, s[40:43], s55 offen offset:{4*k}")
        e(f"v_mov_b32 v28, s96")
        e(f"buffer_store_dword v28, v29, s[40:43], s55 offen offset:{4*31}")
        e("s_mov_b64 exec, -1")

    def masks():
        e("v_and_b32 v28, 1, v2")
        e("v_lshlrev_b32 v28, 4, v28")
        e("v_mov_b32 v29, 0xffff")
        e("v_lshlrev_b32 v28, v28, v29")
        e("v_bfe_u32 v29, v2, 1, 2")
        for r in range(4):
            e(f"v_cmp_eq_u32 vcc, {r}, v29")
            e("s_nop 1")
            e(f"v_cndmask_b32 v{20+r}, 0, v28, vcc")

    def srd(d, b, sz):
        e(f"s_mov_b32 s{d}, s{b}")
        e(f"s_mov_b32 s{d+1}, s{b+1}")
        e(f"s_mov_b32 s{d+2}, {sz}")
        e(f"s_mov_b32 s{d+3}, 0x00020000")

    def poll_nonce(lbl):
        e(f"{lbl}:")
        e("buffer_load_dword v28, v31, s[60:63], 0 offen sc1")
        e("s_waitcnt vmcnt(0)")
        e("v_readfirstlane_b32 s59, v28")
        e("s_nop 3")
        e("s_cmp_eq_u32 s59, 0")
        e(f"s_cbranch_scc1 {lbl}")

    def check_tags(tags, lbl):
        e(f"v_min3_u32 v28, v{tags[0]}, v{tags[1]}, v{tags[2]}")
        e(f"v_max3_u32 v29, v{tags[0]}, v{tags[1]}, v{tags[2]}")
        rest = tags[3:]
        while len(rest) >= 2:
            e(f"v_min3_u32 v28, v28, v{rest[0]}, v{rest[1]}")
            e(f"v_max3_u32 v29, v29, v{rest[0]}, v{rest[1]}")
            rest = rest[2:]
        if rest:
            e(f"v_min_u32 v28, v28, v{rest[0]}")
            e(f"v_max_u32 v29, v29, v{rest[0]}")
        e("v_xor_b32 v28, s59, v28")
        e("v_xor_b32 v29, s59, v29")
        e("v_or_b32 v28, v28, v29")
        e("v_cmp_ne_u32 vcc, 0, v28")
        e("s_nop 1")
        e("s_cmp_lg_u64 vcc, 0")
        e(f"s_cbranch_scc1 {lbl}")

    def exchange(lbl, sbase, sown, vbase, voff, tags, pub, sleep, nfast, ownb=True):
        if not NOA:
            pub(sown, "")
        e(f"{lbl}:")
        for p in range(8):
            e(f"buffer_load_dwordx4 v[{vbase+8*p}:{vbase+3+8*p}], v{voff}, s[40:43], s{80+p} offen offset:{(p%2)*2048} sc1")
            e(f"buffer_load_dwordx4 v[{vbase+4+8*p}:{vbase+7+8*p}], v{voff}, s[40:43], s{80+p} offen offset:{(p%2)*2048+16} sc1")
        e("s_waitcnt vmcnt(0)")
        check_tags(tags, f"{lbl}_retry")
        if ownb:
            e("s_cmp_lg_u32 s91, 0")
            e(f"s_cbranch_scc1 {lbl}_done")
            pub("s92", " sc1")
        e(f"s_branch {lbl}_done")
        e(f"{lbl}_retry:")
        e("s_add_u32 s90, s90, 1")
        e(f"s_cmp_lt_u32 s90, {nfast}")
        e(f"s_cbranch_scc1 {lbl}_sl")
        if ownb:
            e("s_cmp_lg_u32 s91, 0")
            e(f"s_cbranch_scc1 {lbl}_pubd")
            pub("s92", " sc1")
            e("s_mov_b32 s91, 1")
            e(f"{lbl}_pubd:")
        e("v_and_b32 v27, 7, v1")
        e("v_lshlrev_b32 v27, 11, v27")
        e("v_lshrrev_b32 v26, 3, v1")
        e("v_lshlrev_b32 v26, 19, v26")
        e("v_add_u32 v27, v27, v26")
        e("s_mov_b32 exec_lo, 0xffff")
        e("s_mov_b32 exec_hi, 0")
        e(f"buffer_load_dword v28, v27, s[40:43], {sbase} offen offset:2044 sc1")
        e("s_waitcnt vmcnt(0)")
        e("v_cmp_eq_u32 vcc, s59, v28")
        e("s_nop 1")
        e("s_mov_b32 s88, vcc_lo")
        e("s_mov_b64 exec, -1")
        for p in range(8):
            e(f"s_bitcmp1_b32 s88, {8+p}")
            e(f"s_cselect_b32 s{80+p}, {BOFF}, 0")
            e(f"s_add_u32 s{80+p}, s{80+p}, {sbase}")
            if p >= 2:
                e(f"s_add_u32 s{80+p}, s{80+p}, {(p//2)*4096}")
        e(f"{lbl}_sl:")
        if sleep:
            e(f"s_sleep {sleep}")
        e(f"s_branch {lbl}")
        e(f"{lbl}_done:")

    def merge():
        e(f"ds_read_b128 v[208:211], v14 offset:{MLBUF}")
        e(f"ds_read_b128 v[212:215], v13 offset:{OBUF}")
        e(f"ds_read_b128 v[216:219], v13 offset:{OBUF+512}")
        e("s_waitcnt lgkmcnt(2)" if not INSTR else "s_waitcnt lgkmcnt(0)")
        e("v_max_f32 v221, v208, v210")
        e("v_sub_f32 v224, v208, v221")
        e("v_sub_f32 v225, v210, v221")
        e("v_exp_f32 v224, v224")
        e("v_exp_f32 v225, v225")
        e("s_waitcnt lgkmcnt(0)")
        e("v_mul_f32 v222, v224, v209")
        e("v_mul_f32 v228, v224, v212")
        e("v_mul_f32 v229, v224, v213")
        e("v_mul_f32 v230, v224, v214")
        e("v_mul_f32 v220, v224, v215")
        e("v_fmac_f32 v222, v225, v211")
        e("v_fmac_f32 v228, v225, v216")
        e("v_fmac_f32 v229, v225, v217")
        e("v_fmac_f32 v230, v225, v218")
        e("v_fmac_f32 v220, v225, v219")

    def exchange_setup(sbase, sown):
        e("s_mov_b32 s90, 0")
        e("s_mov_b32 s91, 0")
        e(f"s_add_u32 s92, {sown}, {BOFF}")
        for p in range(8):
            e(f"s_add_u32 s{80+p}, {sbase}, {(p//2)*4096}")

    N = "standalone__sliding_block_cached__decode_kernel"
    e(".p2align 8")
    e(f".type {N},@function")
    e(f"{N}:")
    e("s_cmp_ge_u32 s2, 256")
    e("s_cbranch_scc1 L_k1_end")
    e("s_load_dwordx16 s[4:19], s[0:1], 0")
    e("s_memrealtime s[96:97]")
    stamp(0)
    e("v_lshrrev_b32 v9, 6, v0")
    e("v_and_b32 v1, 63, v0")
    e("v_readfirstlane_b32 s46, v9")
    e("v_and_b32 v2, 15, v1")
    e("v_lshrrev_b32 v3, 4, v1")
    e("s_and_b32 s44, s2, 7")
    e("s_lshl_b32 s44, s44, 2")
    e("s_bfe_u32 s55, s2, 0x20003")
    e("s_or_b32 s44, s44, s55")
    e("s_lshr_b32 s45, s2, 5")
    e("v_mov_b32 v31, 0")
    e("s_cmp_eq_u32 s46, 0")
    e("s_cbranch_scc1 L_k1_hq")
    e("s_cmp_eq_u32 s46, 1")
    e("s_cbranch_scc1 L_k1_ho")
    e("s_sub_u32 s48, s46, 2")
    e("v_lshlrev_b32 v6, 8, v2")
    e("v_lshl_add_u32 v6, v3, 4, v6")
    e("v_lshlrev_b32 v7, 10, v3")
    e("v_lshl_add_u32 v7, v2, 4, v7")
    e("s_lshr_b32 s47, s48, 1")
    e("s_lshl_b32 s49, s47, 5")
    e("s_add_u32 s49, s49, s44")
    e("s_lshl_b32 s49, s49, 20")
    e("s_add_u32 s49, s49, 786432")
    e("s_lshl_b32 s55, s45, 15")
    e("s_add_u32 s49, s49, s55")
    e("s_and_b32 s55, s48, 1")
    e("s_lshl_b32 s55, s55, 14")
    e("s_add_u32 s49, s49, s55")
    e("s_add_u32 s50, s49, 4096")
    e("s_add_u32 s51, s49, 8192")
    e("s_add_u32 s52, s49, 12288")
    C = (128 ** -0.5) * math.log2(math.e)
    Cbits = struct.unpack("<I", struct.pack("<f", C))[0]
    e(f"s_mov_b32 s58, 0x{Cbits:08x}")
    e("s_mov_b32 s79, 0")
    e("s_lshl_b32 s55, s47, 8")
    e("v_lshl_add_u32 v8, v2, 4, s55")
    e(f"v_mov_b32 v9, {QFLAG}")
    e("s_lshl_b32 s55, s48, 9")
    e("v_lshlrev_b32 v10, 5, v2")
    e("v_lshl_add_u32 v10, v3, 4, v10")
    e("v_add_u32 v10, s55, v10")
    e("s_lshl_b32 s55, s48, 3")
    e("v_mov_b32 v11, s55")
    masks()
    e("s_waitcnt lgkmcnt(0)")
    srd(24, 6, 67108864)
    srd(28, 8, 67108864)
    if INSTR:
        srd(40, 18, 0x10000000)
    stamp(1)
    if not EARLY: e("s_barrier")
    cnt = [0]
    def pace():
        if WIN and cnt[0] >= WIN:
            e(f"s_waitcnt vmcnt({WIN-1})")
        cnt[0] += 1

    def qksm(nv_issued, tag):
        e(f"ds_read_b128 v[44:47], v8 offset:{QBF}")
        e(f"s_waitcnt vmcnt({nv_issued}) lgkmcnt(0)")
        for r in range(4):
            for n in range(16):
                c = "0" if r == 0 else f"v{192+n}"
                e(f"v_dot2_f32_bf16 v{192+n}, v{64+4*n+r}, v{44+r}, {c}")
        for step in (8, 4, 2, 1):
            for n in range(16):
                e(f"v_add_f32_dpp v{192+n}, v{192+n}, v{192+n} row_ror:{step} row_mask:0xf bank_mask:0xf")
        e("s_nop 1")
        e("v_max3_f32 v28, v192, v193, v194")
        for k in range(195, 207, 2):
            e(f"v_max3_f32 v28, v28, v{k}, v{k+1}")
        e("v_max_f32 v28, v28, v207")
        e("s_nop 0")
        for k in range(4):
            e(f"v_readlane_b32 s{60+k}, v28, {16*k}")
        e("s_nop 1")
        e("v_mov_b32 v30, s60")
        for k in range(1, 4):
            e(f"v_max_f32 v30, s{60+k}, v30")
        e("v_mul_f32 v30, s58, v30")
        for j in range(16):
            e(f"v_fma_f32 v{192+j}, v{192+j}, s58, -v30")
        for j in range(16):
            e(f"v_exp_f32 v{192+j}, v{192+j}")
        e("s_nop 0")
        for j in range(8):
            e(f"v_add_f32 v{208+j}, v{192+2*j}, v{193+2*j}")
        for j in range(4):
            e(f"v_add_f32 v{208+j}, v{208+j}, v{212+j}")
        e("v_add_f32 v208, v208, v210")
        e("v_add_f32 v209, v209, v211")
        e("v_add_f32 v28, v208, v209")
        e("s_nop 0")
        for k in range(4):
            e(f"v_readlane_b32 s{60+k}, v28, {16*k}")
        for n in range(16):
            e(f"v_cvt_pk_bf16_f32 v29, v{192+n}, v{192+n}")
            for r in range(4):
                e(f"v_and_b32 v{64+4*n+r}, v29, v{20+r}")
        e("v_mov_b32 v31, s60")
        for k in range(1, 4):
            e(f"v_add_f32 v31, s{60+k}, v31")
        e("s_mov_b32 s79, 1")

    for T in range(4):
        for t in range(4):
            n = T * 4 + t
            pace()
            if KCOAL: e(f"buffer_load_dwordx4 v[{64+4*n}:{67+4*n}], v7, s[24:27], s{49+T} offen offset:{t*256}{NT}")
            else: e(f"buffer_load_dwordx4 v[{64+4*n}:{67+4*n}], v6, s[24:27], s{49+T} offen offset:{t*64}{NTK}")
            if EARLY and n == EARLY - 1: e("s_barrier")
    def vload(n):
        T, i = n // 4, n % 4
        e(f"buffer_load_dwordx4 v[{128+4*n}:{131+4*n}], v7, s[28:31], s{49+T} offen offset:{i*256}{NT}")
    for n in range(16):
        if n in CHK:
            e("ds_read_b32 v28, v9")
            e("s_waitcnt lgkmcnt(0)")
            e("v_readfirstlane_b32 s59, v28")
            e("s_nop 3")
            e("s_cmp_lg_u32 s59, 0")
            e(f"s_cbranch_scc1 L_k1_rest{n}")
        pace()
        vload(n)
    stamp(2)
    e("L_k1_qspin:")
    e("ds_read_b32 v28, v9")
    e("s_waitcnt lgkmcnt(0)")
    e("v_readfirstlane_b32 s59, v28")
    e("s_nop 3")
    e("s_cmp_eq_u32 s59, 0")
    e("s_cbranch_scc1 L_k1_qspin")
    e("s_branch L_k1_qk")
    for n in range(min(CHK), 16):
        if n in CHK:
            e(f"L_k1_rest{n}:")
        vload(n)
    stamp(2)
    e("L_k1_qk:")
    qksm(16, 99)
    e("L_k1_pv:")
    stamp(3)
    e("s_nop 1")
    for n in range(16):
        e(f"s_waitcnt vmcnt({15 - n})")
        c = "0" if n == 0 else "v[40:43]"
        e(f"v_mfma_f32_16x16x32_bf16 v[40:43], v[{64+4*n}:{67+4*n}], v[{128+4*n}:{131+4*n}], {c}")
    stamp(4)
    e("s_mov_b32 exec_lo, -1")
    e("s_mov_b32 exec_hi, 0")
    e(f"ds_write_b64 v11, v[30:31] offset:{MLBUF}")
    e("s_nop 5")
    e(f"ds_write_b128 v10, v[40:43] offset:{OBUF}")
    e("s_mov_b64 exec, -1")
    e("s_waitcnt lgkmcnt(0)")
    e("s_barrier")
    stamp(5)
    dump_stamps(6)
    e("s_endpgm")

    e("L_k1_hq:")
    e("v_mul_u32_u24 v4, 0x28000, v3")
    e("v_lshl_add_u32 v4, v2, 4, v4")
    e("v_lshrrev_b32 v9, 3, v2")
    e("v_mul_u32_u24 v5, 1280, v9")
    e("v_mul_u32_u24 v29, 40, v3")
    e("v_add_u32 v5, v5, v29")
    e("s_mul_i32 s48, s45, 655360")
    e("s_lshl_b32 s55, s44, 8")
    e("s_add_u32 s48, s48, s55")
    e("s_mul_i32 s51, s45, 160")
    e("s_mov_b32 s56, 0x01000100")
    e("s_mov_b32 s57, 0x03020302")
    e(f"v_mov_b32 v35, {QFLAG}")
    e("s_waitcnt lgkmcnt(0)")
    srd(20, 4, 2560)
    srd(32, 10, 5242880)
    stamp(1)
    for i in range(5):
        e(f"buffer_load_dwordx2 v[{10+2*i}:{11+2*i}], v5, s[20:23], s51 offen offset:{8*i}")
    for i in range(20):
        e(f"buffer_load_dwordx4 v[{64+4*i}:{67+4*i}], v4, s[32:35], s48 offen{NT}")
        if i < 19:
            e("s_add_u32 s48, s48, 8192")
    e("ds_write_b32 v35, v31")
    srd(60, 16, 256)
    e("buffer_load_dword v32, v31, s[60:63], 0 offen sc1")
    e("s_waitcnt lgkmcnt(0)")
    e("s_barrier")
    srd(40, 18, 0x10000000 if INSTR else WS_SIZE)
    masks()
    e("s_lshl_b32 s52, s44, 14")
    e(f"s_add_u32 s52, s52, {QX_OFF}")
    e("s_lshl_b32 s55, s45, 11")
    e("s_add_u32 s55, s55, s52")
    exchange_setup("s52", "s55")
    e("v_lshlrev_b32 v30, 5, v1")
    e("v_lshrrev_b32 v36, 1, v3")
    e("v_lshlrev_b32 v36, 8, v36")
    e("v_lshl_add_u32 v36, v2, 4, v36")
    e("v_and_b32 v34, 1, v3")
    e("v_lshl_add_u32 v36, v34, 3, v36")
    e("s_waitcnt vmcnt(21)")
    for i in range(20):
        X = 10 + i // 2
        e(f"v_perm_b32 v28, v{X}, v{X}, s{56 + (i & 1)}")
        for r in range(4):
            e(f"v_and_b32 v{24+r}, v28, v{20+r}")
        e(f"s_waitcnt vmcnt({20 - i})")
        e("s_nop 0")
        c = "0" if i == 0 else "v[40:43]"
        e(f"v_mfma_f32_16x16x32_bf16 v[40:43], v[24:27], v[{64+4*i}:{67+4*i}], {c}")
    stamp(2)
    e("s_waitcnt vmcnt(0)")
    e("v_readfirstlane_b32 s59, v32")
    e("s_nop 3")
    e("s_cmp_lg_u32 s59, 0")
    e("s_cbranch_scc1 L_k1_have_nonce")
    poll_nonce("L_k1_npoll_q")
    e("L_k1_have_nonce:")
    stamp(3)
    e("s_nop 1")
    for i in range(4):
        e(f"v_mov_b32 v{208+2*i}, v{40+i}")
        e(f"v_mov_b32 v{209+2*i}, s59")
    def pubq(soff, fl):
        e(f"buffer_store_dwordx4 v[208:211], v30, s[40:43], {soff} offen{fl}")
        e(f"buffer_store_dwordx4 v[212:215], v30, s[40:43], {soff} offen offset:16{fl}")
    exchange("L_k1_xq", "s52", "s55", 64, 30, [64 + 4 * q + k for q in range(16) for k in (1, 3)], pubq, SLEEP, NFAST)
    stamp(4)
    for i, off in enumerate((0, 2, 4, 6)):
        e(f"v_add_f32 v{224+i}, v{64+off}, v{72+off}")
        e(f"v_add_f32 v{228+i}, v{80+off}, v{88+off}")
        e(f"v_add_f32 v{216+i}, v{96+off}, v{104+off}")
        e(f"v_add_f32 v{220+i}, v{112+off}, v{120+off}")
    for i in range(4):
        e(f"v_add_f32 v{224+i}, v{224+i}, v{228+i}")
        e(f"v_add_f32 v{216+i}, v{216+i}, v{220+i}")
    for i in range(4):
        e(f"v_add_f32 v{224+i}, v{224+i}, v{216+i}")
    e("v_cvt_pk_bf16_f32 v32, v224, v225")
    e("v_cvt_pk_bf16_f32 v33, v226, v227")
    e("v_mov_b32 v34, 1")
    e(f"ds_write_b64 v36, v[32:33] offset:{QBF}")
    e("s_waitcnt lgkmcnt(0)")
    e("ds_write_b32 v35, v34")
    e("s_lshl_b32 s56, s44, 14")
    e(f"s_add_u32 s56, s56, {OX_OFF + BOFF}")
    e("s_lshl_b32 s55, s45, 11")
    e("s_add_u32 s56, s56, s55")
    e("v_lshrrev_b32 v11, 5, v1")
    e("v_and_b32 v12, 31, v1")
    e("v_lshlrev_b32 v13, 10, v11")
    e("v_lshl_add_u32 v13, v12, 4, v13")
    e("v_lshlrev_b32 v14, 4, v11")
    e("v_mov_b32 v231, s59")
    e("v_mov_b32 v223, s59")
    e("s_waitcnt lgkmcnt(0)")
    stamp(5)
    e("s_barrier")
    merge()
    e("buffer_store_dwordx4 v[228:231], v30, s[40:43], s56 offen sc1")
    e("buffer_store_dwordx4 v[220:223], v30, s[40:43], s56 offen offset:16 sc1")
    dump_stamps(6)
    e("s_endpgm")

    e("L_k1_ho:")
    e("v_mul_u32_u24 v8, 5120, v3")
    e("v_lshl_add_u32 v8, v2, 4, v8")
    e("s_lshl_b32 s53, s44, 7")
    e("s_lshl_b32 s55, s45, 4")
    e("s_add_u32 s53, s53, s55")
    e("s_mul_i32 s53, s53, 1280")
    e("s_add_u32 s54, s53, 2560")
    e("s_waitcnt lgkmcnt(0)")
    srd(60, 16, 256)
    e("s_cmp_lg_u32 s2, 0")
    e("s_cbranch_scc1 L_k1_nonice")
    e("s_or_b32 s96, s96, 1")
    e("v_mov_b32 v30, s96")
    e("s_mov_b32 exec_lo, 1")
    e("s_mov_b32 exec_hi, 0")
    e("buffer_store_dword v30, v31, s[60:63], 0 offen sc1")
    e("s_mov_b64 exec, -1")
    e("L_k1_nonice:")
    srd(36, 12, 5242880)
    srd(40, 18, 0x10000000 if INSTR else WS_SIZE)
    stamp(1)
    e("s_barrier")
    def woloads():
      for j in range(4):
        for cb in range(5):
            n = j * 5 + cb
            e(f"buffer_load_dwordx4 v[{64+4*n}:{67+4*n}], v8, s[36:39], s{53 + j//2} offen offset:{(j%2)*1280 + cb*256}{NT}")
    if not WOLATE: woloads()
    masks()
    e("s_lshl_b32 s52, s44, 14")
    e(f"s_add_u32 s52, s52, {OX_OFF}")
    e("s_lshl_b32 s55, s45, 11")
    e("s_add_u32 s56, s55, s52")
    exchange_setup("s52", "s56")
    e("v_lshlrev_b32 v30, 5, v1")
    e("v_lshrrev_b32 v9, 3, v2")
    e("v_lshlrev_b32 v10, 10, v9")
    e("v_lshl_add_u32 v10, v3, 5, v10")
    e("s_lshl_b32 s55, s45, 7")
    e("v_add_u32 v10, s55, v10")
    e("v_lshrrev_b32 v11, 5, v1")
    e("v_and_b32 v12, 31, v1")
    e("v_lshlrev_b32 v13, 10, v11")
    e("v_lshl_add_u32 v13, v12, 4, v13")
    e("v_lshlrev_b32 v14, 4, v11")
    e("s_lshl_b32 s57, s44, 3")
    e("s_add_u32 s57, s57, s45")
    e("s_mul_i32 s57, s57, 5120")
    e("v_lshrrev_b32 v15, 1, v3")
    e("v_mul_u32_u24 v15, 2560, v15")
    e("v_lshl_add_u32 v15, v2, 5, v15")
    e("v_and_b32 v16, 1, v3")
    e("v_lshl_add_u32 v15, v16, 4, v15")
    poll_nonce("L_k1_npoll_o")
    if WOLATE: woloads()
    e("s_nop 1")
    e("v_mov_b32 v231, s59")
    e("v_mov_b32 v223, s59")
    stamp(2)
    e("s_barrier")
    stamp(3)
    merge()
    stamp(4)
    def pubo(soff, fl):
        e(f"buffer_store_dwordx4 v[228:231], v30, s[40:43], {soff} offen{fl}")
        e(f"buffer_store_dwordx4 v[220:223], v30, s[40:43], {soff} offen offset:16{fl}")
    exchange("L_k1_xo", "s52", "s56", 144, 10, [144 + 4 * q + 3 for q in range(16)], pubo, SLEEPO, NFASTO, ownb=False)
    stamp(5)
    Ms = [149 + 8 * p for p in range(8)]
    e(f"v_max3_f32 v28, v{Ms[0]}, v{Ms[1]}, v{Ms[2]}")
    e(f"v_max3_f32 v28, v28, v{Ms[3]}, v{Ms[4]}")
    e(f"v_max3_f32 v28, v28, v{Ms[5]}, v{Ms[6]}")
    e(f"v_max_f32 v28, v28, v{Ms[7]}")
    for p in range(8):
        e(f"v_sub_f32 v{208+p}, v{Ms[p]}, v28")
    for p in range(8):
        e(f"v_exp_f32 v{208+p}, v{208+p}")
    e("s_nop 0")
    e(f"v_mul_f32 v29, v208, v150")
    for p in range(1, 8):
        e(f"v_fmac_f32 v29, v{208+p}, v{150+8*p}")
    e("v_rcp_f32 v29, v29")
    offs = (0, 1, 2, 4)
    for j in range(4):
        e(f"v_mul_f32 v{216+j}, v208, v{144+offs[j]}")
    for p in range(1, 8):
        for j in range(4):
            e(f"v_fmac_f32 v{216+j}, v{208+p}, v{144+8*p+offs[j]}")
    for j in range(4):
        e(f"v_mul_f32 v{216+j}, v{216+j}, v29")
    for j in range(4):
        e(f"v_cvt_pk_bf16_f32 v28, v{216+j}, v{216+j}")
        for r in range(4):
            e(f"v_and_b32 v{240+4*j+r}, v28, v{20+r}")
    e("s_nop 1")
    for j in range(4):
        for cb in range(5):
            n = j * 5 + cb
            acc = f"v[{32+4*cb}:{35+4*cb}]"
            c = "0" if j == 0 else acc
            e(f"v_mfma_f32_16x16x32_bf16 {acc}, v[{240+4*j}:{243+4*j}], v[{64+4*n}:{67+4*n}], {c}")
    e("s_nop 3")
    for cb in range(5):
        e(f"buffer_store_dwordx4 v[{32+4*cb}:{35+4*cb}], v15, s[40:43], s57 offen offset:{cb*512}")
    stamp(6)
    dump_stamps(7)
    e("L_k1_end:")
    e("s_endpgm")
    return L


def k2():
    L = []
    e = L.append
    N = "final_reduce_kernel"
    e(".p2align 8")
    e(f".type {N},@function")
    e(f"{N}:")
    e("s_cmp_ge_u32 s2, 40")
    e("s_cbranch_scc1 L_k2_end")
    e("s_load_dwordx2 s[4:5], s[0:1], 40")
    e("s_load_dwordx2 s[6:7], s[0:1], 56")
    e("s_cmp_ge_u32 s2, 20")
    e("s_cselect_b32 s20, 1, 0")
    e("s_mul_i32 s21, s20, 20")
    e("s_sub_u32 s21, s2, s21")
    e("v_and_b32 v1, 7, v0")
    e("v_lshrrev_b32 v2, 3, v0")
    e("v_mul_u32_u24 v3, 40960, v2")
    e("v_lshl_add_u32 v3, v1, 4, v3")
    e("s_mul_i32 s22, s20, 2560")
    e("s_lshl_b32 s23, s21, 7")
    e("s_add_u32 s22, s22, s23")
    e("s_waitcnt lgkmcnt(0)")
    for d, b, sz in [(8, 4, 2560), (12, 6, Y_SIZE)]:
        e(f"s_mov_b32 s{d}, s{b}")
        e(f"s_mov_b32 s{d+1}, s{b+1}")
        e(f"s_mov_b32 s{d+2}, {sz}")
        e(f"s_mov_b32 s{d+3}, 0x00020000")
    for s in range(8):
        e(f"buffer_load_dwordx4 v[{32+4*s}:{35+4*s}], v3, s[12:15], s22 offen")
        if s < 7:
            e("s_add_u32 s22, s22, 5120")
    e("v_lshlrev_b32 v7, 4, v0")
    e("s_waitcnt vmcnt(0)")
    for step in (4, 2, 1):
        for s in range(step):
            for i in range(4):
                e(f"v_add_f32 v{32+4*s+i}, v{32+4*s+i}, v{32+4*(s+step)+i}")
    e("ds_write_b128 v7, v[32:35]")
    e("s_waitcnt lgkmcnt(0)")
    e("s_barrier")
    e("v_cmp_gt_u32 vcc, 32, v0")
    e("s_and_saveexec_b64 s[24:25], vcc")
    e("s_cbranch_execz L_k2_end")
    e("v_lshlrev_b32 v7, 2, v0")
    for h in range(32):
        e(f"ds_read_b32 v{16+h}, v7 offset:{h*128}")
    e("s_mul_i32 s26, s20, 1280")
    e("s_lshl_b32 s27, s21, 6")
    e("s_add_u32 s26, s26, s27")
    e("v_lshlrev_b32 v7, 1, v0")
    e("s_waitcnt lgkmcnt(0)")
    for step in (16, 8, 4, 2, 1):
        for h in range(step):
            e(f"v_add_f32 v{16+h}, v{16+h}, v{16+h+step}")
    e("v_cvt_pk_bf16_f32 v16, v16, v16")
    e("buffer_store_short v16, v7, s[8:11], s26 offen")
    e("L_k2_end:")
    e("s_endpgm")
    return L


def kd(name, vgpr, sgpr):
    acc = (vgpr + 3) // 4 * 4
    return f""".amdhsa_kernel {name}
  .amdhsa_next_free_vgpr {vgpr}
  .amdhsa_next_free_sgpr {sgpr}
  .amdhsa_accum_offset {acc}
  .amdhsa_group_segment_fixed_size 0
  .amdhsa_kernarg_size 64
  .amdhsa_user_sgpr_count 2
  .amdhsa_user_sgpr_kernarg_segment_ptr 1
  .amdhsa_system_sgpr_workgroup_id_x 1
.end_amdhsa_kernel
"""


def main():
    out = [HEADER.rstrip("\n")]
    out.append(f"; @launch kernel=standalone__sliding_block_cached__decode_kernel grid=(256,1,1) block=(384,1,1) lds={LDS1}")
    out.append("; @launch kernel=final_reduce_kernel grid=(40,1,1) block=(256,1,1) lds=4096")
    out.append('.amdgcn_target "amdgcn-amd-amdhsa--gfx950"')
    out.append(".text")
    out.append(".globl standalone__sliding_block_cached__decode_kernel")
    out.append(".globl final_reduce_kernel")
    out += k1()
    out += k2()
    out.append('.section .rodata,"a"')
    out.append(".p2align 6")
    out.append(kd("standalone__sliding_block_cached__decode_kernel", 256, 100))
    out.append(".p2align 6")
    out.append(kd("final_reduce_kernel", 72, 40))
    sys.stdout.write("\n".join(out))


main()
```
